```python
import torch

def _softmax(x, axis=-1):
    return torch.softmax(x, dim=axis)

def _gelu(x):
    return torch.nn.functional.gelu(x, approximate='tanh')

def _silu(x):
    return torch.nn.functional.silu(x)

def _sigmoid(x):
    return torch.sigmoid(x)

def _layernorm(x, axis=-1, eps=1e-05):
    m = x.mean(dim=axis, keepdim=True)
    v = x.var(dim=axis, keepdim=True, unbiased=False)
    return (x - m) / torch.sqrt(v + eps)

def _scatter_add(tgt, idx, src, axis=0):
    return tgt.clone().index_add_(axis, idx, src)

def _segment_sum(src, seg, n):
    out = torch.zeros((n,) + src.shape[1:], dtype=src.dtype)
    return out.index_add_(0, seg, src)

def _pad(x, pw):
    flat = tuple((v for pair in reversed(pw) for v in pair))
    return torch.nn.functional.pad(x, flat)
kernel_name = 'standalone__memory_aug_recurrent_mem_tr__prompt'

def setup_inputs():

    _w = lambda a: (lambda t: t.to(torch.bfloat16) if t.is_floating_point() else t)(torch.as_tensor(a))
    B, S, Dm = (1, 2048, 448)
    H, Dh = (16, 256)
    M, seg = (8, 32)
    seg = min(seg, S)
    S = S // seg * seg
    return {'x': _w((lambda *s: torch.randn(*s, dtype=torch.bfloat16) * 0.05)(B, S, Dm)), 'mem0': _w((lambda *s: torch.randn(*s, dtype=torch.bfloat16) * 0.4)(B, M, Dm)), 'Wq': _w((lambda *s: torch.randn(*s, dtype=torch.bfloat16) * 6.4)(Dm, H, Dh) * Dm ** (-0.5)), 'Wk': _w((lambda *s: torch.randn(*s, dtype=torch.bfloat16) * 6.4)(Dm, H, Dh) * Dm ** (-0.5)), 'Wv': _w((lambda *s: torch.randn(*s, dtype=torch.bfloat16) * 0.4)(Dm, H, Dh) * Dm ** (-0.5)), 'Wo': _w((lambda *s: torch.randn(*s, dtype=torch.bfloat16) * 0.4)(H, Dh, Dm) * (H * Dh) ** (-0.5)), 'seg_len': seg}

def reference(x, mem0, Wq, Wk, Wv, Wo, seg_len):
    B, S, Dm = x.shape
    H, Dh = (Wq.shape[1], Wq.shape[2])
    M = mem0.shape[1]
    scale = Dh ** (-0.5)
    n_seg = S // seg_len
    L = M + seg_len
    idx = torch.arange(L)
    mask = (idx[:, None] < M) | (idx[:, None] >= idx[None, :])
    mem = mem0
    outs = []
    for s in range(n_seg):
        xs = x[:, s * seg_len:(s + 1) * seg_len, :].clone()
        h = torch.concatenate([mem, xs], axis=1)
        q = torch.einsum('btd,dhe->bhte', h, Wq)
        k = torch.einsum('btd,dhe->bhte', h, Wk)
        v = torch.einsum('btd,dhe->bhte', h, Wv)
        scores = torch.einsum('bhqe,bhke->bhqk', q, k) * scale
        scores = torch.where(mask[None, None], scores, -1000000000.0)
        p = _softmax(scores, axis=-1)
        o = torch.einsum('bhqk,bhke->bhqe', p, v)
        o = torch.einsum('bhte,hed->btd', o, Wo)
        mem = o[:, :M, :].clone()
        outs.append(o[:, M:, :])
    return torch.concatenate(outs, axis=1)
```

```python
import re

def v(i, n=1):
    return f"v{i}" if n == 1 else f"v[{i}:{i+n-1}]"
def a(i, n=1):
    return f"a{i}" if n == 1 else f"a[{i}:{i+n-1}]"
def s(i, n=1):
    return f"s{i}" if n == 1 else f"s[{i}:{i+n-1}]"

_REG = re.compile(r"^(-|\|)?(abs\()?([vas])(\d+|\[(\d+):(\d+)\])\)?\|?$")

def regs_of(tok):
    tok = tok.strip()
    if tok in ("vcc",): return {("s", "vcc")}
    if tok in ("exec",): return {("s", "exec")}
    if tok == "m0": return {("s", "m0")}
    m = _REG.match(tok)
    if not m: return set()
    k = m.group(3)
    if m.group(5) is not None:
        return {(k, i) for i in range(int(m.group(5)), int(m.group(6)) + 1)}
    return {(k, int(m.group(4)))}

def split_ops(s_):
    out, depth, cur = [], 0, ""
    for ch in s_:
        if ch in "[(": depth += 1
        if ch in "])": depth -= 1
        if ch == "," and depth == 0:
            out.append(cur.strip()); cur = ""
        else:
            cur += ch
    if cur.strip(): out.append(cur.strip())
    return out

TRANS = ("v_exp_f32", "v_log_f32", "v_rcp_f32", "v_rsq_f32", "v_sqrt_f32", "v_sin_f32", "v_cos_f32")

class I:
    def __init__(self, text):
        self.text = text
        t = text.split(";")[0].strip()
        self.label = t.endswith(":")
        self.kind = "other"; self.rd = set(); self.wr = set()
        self.mfma_c = set(); self.mfma_ab = set(); self.dpp = False; self.nop = 0
        self.store_data = set(); self.mn = ""
        if not t or self.label or t.startswith("."):
            self.kind = "none"; return
        parts = t.split(None, 1)
        mn = parts[0]; self.mn = mn
        rest = parts[1] if len(parts) > 1 else ""
        ops = split_ops(rest)
        mods = ""
        if ops:
            last = ops[-1].split()
            if last:
                ops[-1] = last[0]; mods = " ".join(last[1:])
        self.mods = mods
        R = [regs_of(o) for o in ops]
        if mn == "s_nop":
            self.kind = "nop"; self.nop = int(ops[0], 0) + 1
        elif mn.startswith("v_mfma") or mn.startswith("v_smfmac"):
            self.kind = "mfma"
            self.wr = R[0]
            if mn.startswith("v_smfmac"):
                self.mfma_ab = R[1] | R[2] | R[3]; self.mfma_c = R[0]
            else:
                self.mfma_ab = R[1] | R[2]; self.mfma_c = R[3]
            self.rd = self.mfma_ab | self.mfma_c
            self.passes = 8 if "32x32" in mn else 4
        elif mn.startswith("v_"):
            self.kind = "valu"
            self.trans = mn.replace("_e32", "").replace("_e64", "") in TRANS
            if mn.startswith("v_cmp"):
                self.wr = R[0]; self.rd = set().union(*R[1:])
                if mn.startswith("v_cmpx"): self.wr |= {("s", "exec")}
            elif mn.startswith("v_permlane") and "swap" in mn:
                self.wr = R[0] | R[1]; self.rd = R[0] | R[1]; self.kind = "valu"; self.perm = True
            elif mn.startswith("v_swap"):
                self.wr = R[0] | R[1]; self.rd = R[0] | R[1]
            elif mn.startswith("v_readfirstlane") or mn.startswith("v_readlane"):
                self.wr = R[0]; self.rd = set().union(*R[1:]); self.rdlane = True
            elif mn.startswith("v_add_co") or mn.startswith("v_addc_co") or mn.startswith("v_sub_co"):
                self.wr = R[0] | R[1]; self.rd = set().union(*R[2:])
            else:
                self.wr = R[0]; self.rd = set().union(*R[1:]) if len(R) > 1 else set()
                if mn.startswith("v_fmac") or mn.startswith("v_pk_fmac") or "dpp" in mn or "row_" in mods or "quad_perm" in mods:
                    self.rd |= R[0]
                if mn.startswith("v_cndmask") and len(ops) == 3: self.rd |= {("s", "vcc")}
            if "row_" in mods or "quad_perm" in mods or "dpp" in mn: self.dpp = True
        elif mn.startswith("ds_"):
            self.kind = "ds"
            if mn.startswith("ds_read") or mn.startswith("ds_bpermute") or mn.startswith("ds_swizzle"):
                self.wr = R[0]; self.rd = set().union(*R[1:])
            else:
                self.rd = set().union(*R)
        elif mn.startswith("buffer_") or mn.startswith("global_"):
            self.kind = "vmem"
            if mn.startswith("buffer_inv") or mn.startswith("buffer_wbl2"):
                pass
            elif "load" in mn and re.search(r"\blds\b", mods):
                self.rd = set().union(*R) | {("s", "m0")}; self.ldsdma = True
            elif "load" in mn:
                self.wr = R[0]; self.rd = set().union(*R[1:])
            elif "atomic" in mn:
                self.rd = set().union(*R)
                if "sc0" in mods: self.wr = R[0]
            else:
                self.rd = set().union(*R)
                wide = mn.endswith("x3") or mn.endswith("x4")
                if wide:
                    self.store_data = R[0] if mn.startswith("buffer_") else R[1]
        elif mn.startswith("s_"):
            self.kind = "salu"
            if mn.startswith(("s_cmp", "s_cbranch", "s_branch", "s_waitcnt", "s_barrier", "s_endpgm", "s_sleep", "s_setprio")):
                self.rd = set().union(*R) if R else set()
            else:
                self.wr = R[0] if R else set(); self.rd = set().union(*R[1:]) if len(R) > 1 else set()
                if "saveexec" in mn: self.wr |= {("s", "exec")}

def vg(S): return {r for r in S if r[0] in "va"}
def sg(S): return {r for r in S if r[0] == "s"}

def required(p, c):
    need = 0
    if p.kind == "valu":
        pv = vg(p.wr); ps = sg(p.wr)
        if pv:
            if c.kind == "mfma" and pv & c.rd: need = max(need, 2)
            if c.kind == "valu" and c.dpp and pv & c.rd: need = max(need, 2)
            if c.kind == "valu" and getattr(c, "perm", False) and pv & c.rd: need = max(need, 2)
            if c.kind == "valu" and getattr(c, "rdlane", False) and pv & c.rd: need = max(need, 1)
            if getattr(p, "trans", False) and c.kind == "valu" and not getattr(c, "trans", False) and pv & c.rd: need = max(need, 1)
        if ps:
            if c.kind == "valu" and ps & c.rd: need = max(need, 2)
            if c.kind == "valu" and getattr(c, "rdlane", False) and ps & c.rd: need = max(need, 4)
            if c.kind == "vmem" and ps & c.rd: need = max(need, 5)
            if ("s", "exec") in ps:
                if c.kind == "mfma": need = max(need, 4)
                if c.kind == "valu" and c.dpp: need = max(need, 5)
    if p.kind == "mfma":
        n = {4: 8, 8: 12}[p.passes]
        if c.kind == "mfma":
            if p.wr & c.mfma_ab: need = max(need, n)
            if p.wr & c.mfma_c and not (p.wr == c.mfma_c):
                need = max(need, {4: 6, 8: 10}[p.passes])
            if p.wr & c.wr and not (p.wr & c.mfma_c):
                need = max(need, {4: 6, 8: 10}[p.passes])
        elif c.kind in ("valu", "ds", "vmem"):
            if p.wr & (c.rd | c.wr): need = max(need, n)
            if c.kind == "valu" and p.mfma_c & c.wr: need = max(need, {4: 3, 8: 7}[p.passes])
    if p.kind == "vmem" and p.store_data:
        if c.kind == "valu" and p.store_data & c.wr: need = max(need, 2)
        elif c.kind in ("ds", "vmem", "mfma") and p.store_data & c.wr: need = max(need, 1)
    if p.kind == "salu" and ("s", "m0") in p.wr:
        if getattr(c, "ldsdma", False): need = max(need, 1)
    return need

class Asm:
    def __init__(self):
        self.lines = []
    def __call__(self, text):
        for ln in text.split("\n"):
            self.lines.append(ln)
    def label(self, name): self.lines.append(name + ":")
    def comment(self, t): self.lines.append("; " + t)

def fix_hazards(lines, mfma_time=True, verbose=False, window=24):
    out = []
    ninserted = 0
    hist = []
    t = 0
    last_mfma_t = -100; last_mfma_p = 0
    inserted_log = []
    for ln in lines:
        ins = I(ln)
        if ins.kind == "none":
            out.append(ln)
            if ins.label:
                pass
            continue
        def issue_time(t0):
            if ins.kind == "mfma" and mfma_time:
                return max(t0, last_mfma_t + last_mfma_p)
            return t0
        ti = issue_time(t)
        need_t = ti
        why = None
        for (p, tp) in hist:
            n = required(p, ins)
            if n and tp + 1 + n > need_t:
                need_t = tp + 1 + n; why = p.text.strip()
        if need_t > ti:
            k = need_t - t
            ninserted += 1
            inserted_log.append((k, why, ln.strip()))
            kk = k
            while kk > 0:
                step = min(kk, 16)
                out.append(f"    s_nop {step-1}")
                kk -= step
            ti = need_t
        out.append(ln)
        dur = ins.nop if ins.kind == "nop" else 1
        hist.append((ins, ti))
        if ins.kind == "mfma":
            last_mfma_t = ti; last_mfma_p = ins.passes
        t = ti + dur
        hist = [(p, tp) for (p, tp) in hist if t - tp <= window]
    if verbose:
        for k, why, ln in inserted_log:
            print(f"  nop {k}: after [{why}] before [{ln}]")
    return out, inserted_log
```

```python
from asmlib import *
from layout import *

S_WS=4; S_WA=8; S_WB=12; S_X=16; S_M0=20
V_ACC=0x40
def ACC(rt, tau): return V_ACC + (rt*7 + tau)*4
V_A=176
V_B=208
V_B2=8
L_STRIDE = 896

def prep_kernel(A):
    n = "prep_kernel"
    A(f""".globl {n}
.p2align 8
.type {n},@function
{n}:
    s_cmp_ge_u32 s2, 256
    s_cbranch_scc1 {n}_end
    s_load_dwordx4 s[24:27], s[0:1], 0      ; x, mem0
    s_load_dwordx4 s[28:31], s[0:1], 16
    s_load_dwordx4 s[32:35], s[0:1], 32
    s_load_dwordx2 s[36:37], s[0:1], 72     ; ws
    v_lshrrev_b32 v1, 6, v0
    v_and_b32 v2, 63, v0                    ; lane
    s_nop 0
    v_readfirstlane_b32 s3, v1              ; wave
    s_waitcnt lgkmcnt(0)
    s_mov_b32 s4, s36
    s_mov_b32 s5, s37
    s_mov_b32 s6, 0x10000000
    s_mov_b32 s7, 0x00020000
    s_cmp_ge_u32 s2, 224
    s_cbranch_scc1 {n}_misc
    v_lshrrev_b32 v3, 4, v2                 ; g
    v_and_b32 v4, 15, v2                    ; n / i
    s_cmp_ge_u32 s2, 112
    s_cbranch_scc1 {n}_cjob
""")
    def row_addr(A, sjob):
        A(f"""    s_mul_i32 s40, {sjob}, 9363          ; /7 via 9363/65536
    s_lshr_b32 s40, s40, 16
    s_mul_i32 s41, s40, 7
    s_sub_u32 s41, {sjob}, s41
    v_lshrrev_b32 v5, 2, v4
    v_lshlrev_b32 v5, 3, v5
    v_and_b32 v6, 3, v4
    v_add_u32 v5, v5, v6
    s_lshl_b32 s42, s41, 6
    v_add_u32 v5, s42, v5
    v_lshlrev_b32 v5, 13, v5
    v_lshlrev_b32 v6, 4, v3
    s_lshl_b32 s42, s40, 9
    v_add3_u32 v5, v5, v6, s42""")
    RT_OFF = [0, 4*8192, 32*8192, 36*8192]
    def load_a(buf, srd, eps):
        l = []
        for rt in range(4):
            l.append(f"    buffer_load_dwordx4 {v(V_A+16*buf+4*rt,4)}, v5, s[{srd}:{srd+3}], s{44+rt} offen offset:{64*eps}")
        return l
    def zero_acc(A):
        for r in range(112): A(f"    v_mov_b32 v{V_ACC+r}, 0")
    def store_frags(A, vaddr, stride_tau_fn):
        for tau in range(7):
            for half in range(2):
                a0 = ACC(2*half, tau); a1 = ACC(2*half+1, tau)
                t = 8 + 4*((tau*2+half) & 3)
                A(f"""    v_cvt_pk_bf16_f32 v{t}, v{a0}, v{a0+1}
    v_cvt_pk_bf16_f32 v{t+1}, v{a0+2}, v{a0+3}
    v_cvt_pk_bf16_f32 v{t+2}, v{a1}, v{a1+1}
    v_cvt_pk_bf16_f32 v{t+3}, v{a1+2}, v{a1+3}""")
                A(stride_tau_fn(tau, half, t))
    A(f"""    s_mov_b32 s8, s28
    s_mov_b32 s9, s29
    s_mov_b32 s10, {448*8192}
    s_mov_b32 s11, 0x00020000
    s_mov_b32 s12, s30
    s_mov_b32 s13, s31
    s_mov_b32 s14, {448*8192}
    s_mov_b32 s15, 0x00020000""")
    row_addr(A, "s2")
    for rt in range(4): A(f"    s_mov_b32 s{44+rt}, {RT_OFF[rt]}")
    A(f"""    v_lshrrev_b32 v6, 2, v4               ; n>>2
    v_bfe_u32 v7, v4, 1, 1
    v_and_b32 v36, 1, v4
    v_lshlrev_b32 v37, 2, v7
    v_add_u32 v37, v37, v36               ; 4*((n>>1)&1) + (n&1)
    s_mul_i32 s42, s3, 112
    v_lshlrev_b32 v38, 4, v6
    v_add3_u32 v38, v38, v37, s42
    v_lshlrev_b32 v39, 3, v6
    v_add3_u32 v39, v39, v37, s42
    v_add_u32 v40, s42, v4                ; tau 6 (+96)
    v_lshlrev_b32 v6, 4, v3
    s_lshl_b32 s42, s40, 9
    v_add_u32 v6, s42, v6                 ; h*512 + 16g""")
    col = [(38,0),(38,2),(38,8),(38,10),(39,64),(39,66),(40,96)]
    for tau,(r,c) in enumerate(col):
        A(f"""    v_add_u32 v7, {c}, v{r}
    v_lshlrev_b32 v7, 13, v7
    v_add_u32 v{48+tau}, v7, v6""")
    zero_acc(A)
    BB = [V_B, V_B2]
    def load_b(buf, eps):
        return [f"    buffer_load_dwordx4 {v(BB[buf]+4*tau,4)}, v{48+tau}, s[12:15], 0 offen offset:{64*eps}" for tau in range(7)]
    A("\n".join(load_a(0, 8, 0) + load_b(0, 0)))
    for eps in range(8):
        b = eps & 1
        if eps < 7:
            A("\n".join(load_a(1-b, 8, eps+1) + load_b(1-b, eps+1)))
            A("    s_waitcnt vmcnt(11)")
        else:
            A("    s_waitcnt vmcnt(0)")
        for tau in range(7):
            for rt in range(4):
                A(f"    v_mfma_f32_16x16x32_bf16 {v(ACC(rt,tau),4)}, {v(V_A+16*b+4*rt,4)}, {v(BB[b]+4*tau,4)}, {v(ACC(rt,tau),4)}")
    A(f"""    s_lshl_b32 s42, s40, 2
    s_add_u32 s42, s42, s3
    s_mul_i32 s42, s42, 49
    s_add_u32 s42, s42, s41
    s_lshl_b32 s42, s42, 11
    s_add_u32 s42, s42, {WS_AF}
    v_lshlrev_b32 v5, 4, v2""")
    def st_a(tau, half, t):
        return f"""    s_add_u32 s43, s42, {tau*7*2048}
    buffer_store_dwordx4 {v(t,4)}, v5, s[4:7], s43 offen offset:{half*1024}"""
    store_frags(A, 5, st_a)
    A("    s_endpgm")
    A(f"""{n}_cjob:
    s_mov_b32 s8, s32
    s_mov_b32 s9, s33
    s_mov_b32 s10, {448*8192}
    s_mov_b32 s11, 0x00020000
    s_mov_b32 s12, s34
    s_mov_b32 s13, s35
    s_mov_b32 s14, {16*256*896}
    s_mov_b32 s15, 0x00020000
    s_sub_u32 s39, s2, 112""")
    row_addr(A, "s39")
    for rt in range(4): A(f"    s_mov_b32 s{44+rt}, {RT_OFF[rt]}")
    A(f"""    v_lshlrev_b32 v6, 4, v2               ; lane*16
    s_mul_i32 s48, s40, {256*896}
    s_mul_i32 s49, s3, 7168
    s_add_u32 s48, s48, s49
    v_lshrrev_b32 v7, 2, v4
    v_lshlrev_b32 v36, 3, v3
    v_add_u32 v7, v7, v36
    v_mul_u32_u24 v7, {L_STRIDE}, v7
    v_and_b32 v36, 3, v4
    v_lshlrev_b32 v36, 3, v36
    s_mul_i32 s50, s3, 224
    v_add3_u32 v7, v7, v36, s50""")
    zero_acc(A)
    def dma_c(buf, eps):
        l = [f"    s_add_u32 s50, s49, {buf*28672}", "    s_mov_b32 m0, s50", f"    s_add_u32 s51, s48, {eps*28672}"]
        for i in range(4): l.append(f"    buffer_load_dwordx4 v6, s[12:15], s51 offen offset:{1024*i} lds")
        l += ["    s_add_u32 s50, s50, 4096", "    s_mov_b32 m0, s50", "    s_add_u32 s51, s51, 4096"]
        for i in range(3): l.append(f"    buffer_load_dwordx4 v6, s[12:15], s51 offen offset:{1024*i} lds")
        return l
    A("\n".join(load_a(0, 8, 0) + dma_c(0, 0)))
    for eps in range(8):
        b = eps & 1
        A("    s_waitcnt vmcnt(0)\n    s_barrier")
        if eps < 7:
            A("\n".join(load_a(1-b, 8, eps+1) + dma_c(1-b, eps+1)))
        base = b*28672
        def rd(tau, dst):
            return [f"    ds_read_b64_tr_b16 {v(dst,2)}, v7 offset:{base + 32*tau}",
                    f"    ds_read_b64_tr_b16 {v(dst+2,2)}, v7 offset:{base + 32*tau + 4*L_STRIDE}"]
        A("\n".join(rd(0, V_B)))
        for tau in range(7):
            cur = V_B + 4*(tau&1)
            if tau < 6:
                A("\n".join(rd(tau+1, V_B + 4*((tau+1)&1))))
                A("    s_waitcnt lgkmcnt(2)")
            else:
                A("    s_waitcnt lgkmcnt(0)")
            for rt in range(4):
                A(f"    v_mfma_f32_16x16x32_bf16 {v(ACC(rt,tau),4)}, {v(V_A+16*b+4*rt,4)}, {v(cur,4)}, {v(ACC(rt,tau),4)}")
    A(f"""    v_bfe_u32 v5, v4, 1, 1
    v_lshlrev_b32 v5, 3, v5
    v_lshrrev_b32 v6, 2, v4
    v_lshlrev_b32 v6, 1, v6
    v_and_b32 v7, 1, v4
    v_add3_u32 v5, v5, v6, v7             ; pinv(n)
    v_lshlrev_b32 v6, 4, v3
    v_add_u32 v5, v5, v6
    v_lshlrev_b32 v5, 4, v5
    s_mul_i32 s50, s3, 7""")
    def st_c(tau, half, t):
        return f"""    s_add_u32 s51, s50, {tau}
    s_lshr_b32 s52, s51, 1
    s_and_b32 s51, s51, 1
    s_lshl_b32 s52, s52, 4
    s_add_u32 s52, s52, s40
    s_lshl_b32 s52, s52, 1
    s_add_u32 s52, s52, s51
    s_mul_i32 s52, s52, 7
    s_add_u32 s52, s52, s41
    s_lshl_b32 s52, s52, 11
    s_add_u32 s52, s52, {WS_CF}
    buffer_store_dwordx4 {v(t,4)}, v5, s[4:7], s52 offen offset:{half*1024}"""
    store_frags(A, 5, st_c)
    A("    s_endpgm")
    A(f"""{n}_misc:
    s_mov_b32 s16, s24
    s_mov_b32 s17, s25
    s_mov_b32 s18, {S*DM*2}
    s_mov_b32 s19, 0x00020000
    s_mov_b32 s20, s26
    s_mov_b32 s21, s27
    s_mov_b32 s22, {M*DM*2}
    s_mov_b32 s23, 0x00020000
    s_sub_u32 s39, s2, 224
    s_lshl_b32 s40, s39, 8
    v_add_u32 v3, s40, v0                 ; t = 0..8191
""")
    for i in range(14):
        A(f"""    v_add_u32 v4, {8192*i}, v3
    v_and_b32 v5, 31, v4                  ; tok
    v_lshrrev_b32 v6, 5, v4               ; s*56+gam
    s_mov_b32 s41, 74899                  ; /56 via 74899/2^22
    v_mul_lo_u32 v7, v6, s41
    v_lshrrev_b32 v7, 22, v7              ; s
    v_mul_u32_u24 v8, 56, v7
    v_sub_u32 v8, v6, v8                  ; gam
    v_lshlrev_b32 v7, 5, v7
    v_add_u32 v7, v7, v5
    v_mul_u32_u24 v7, 896, v7
    v_lshlrev_b32 v8, 4, v8
    v_add_u32 v7, v7, v8
    buffer_load_dwordx4 {v(16+4*i,4)}, v7, s[16:19], 0 offen""")
    A(f"    v_lshlrev_b32 v4, 4, v3")
    for i in range(14):
        A(f"""    s_waitcnt vmcnt({13-i})
    s_mov_b32 s41, {WS_XF + 8192*16*i}
    buffer_store_dwordx4 {v(16+4*i,4)}, v4, s[4:7], s41 offen""")
    A("    s_waitcnt vmcnt(0)")
    for i in range(16):
        A(f"""    v_add_u32 v4, {8192*i}, v3
    v_and_b32 v5, 15, v4                  ; n
    v_bfe_u32 v6, v4, 4, 2                ; gB
    v_bfe_u32 v7, v4, 6, 1                ; half
    v_bfe_u32 v8, v4, 7, 1                ; T
    v_bfe_u32 v9, v4, 8, 1                ; u
    v_bfe_u32 v10, v4, 9, 2               ; w
    v_lshrrev_b32 v11, 11, v4             ; s
    v_lshlrev_b32 v11, 5, v11
    v_lshlrev_b32 v8, 4, v8
    v_add3_u32 v11, v11, v8, v5
    v_mul_u32_u24 v11, 896, v11
    v_mul_u32_u24 v10, 224, v10
    v_lshlrev_b32 v12, 2, v7
    v_add_u32 v12, v12, v6
    v_lshlrev_b32 v13, 4, v12             ; u0 : 16*j bytes
    v_lshrrev_b32 v14, 1, v12             ; g = j>>1
    v_lshlrev_b32 v15, 4, v14
    v_add_u32 v15, 128, v15               ; u1 even : (64 + 8g)*2
    v_lshlrev_b32 v14, 3, v14
    v_add_u32 v14, 192, v14               ; u1 odd : (96 + 4g)*2
    v_and_b32 v12, 1, v12
    v_and_b32 v12, v12, v9
    v_cmp_eq_u32 vcc, 1, v12
    s_nop 1
    v_cndmask_b32 v15, v15, v14, vcc
    v_cmp_eq_u32 s[42:43], 1, v9
    s_nop 1
    v_cndmask_b32 v13, v13, v15, s[42:43]
    v_add3_u32 v11, v11, v10, v13
    buffer_load_dwordx4 {v(16,4)}, v11, s[16:19], 0 offen
    s_waitcnt vmcnt(0)
    v_cndmask_b32 v18, v18, v17, vcc
    v_cndmask_b32 v17, v17, 0, vcc
    v_cndmask_b32 v19, v19, 0, vcc
    v_lshlrev_b32 v4, 4, v4
    s_mov_b32 s41, {WS_XS}
    buffer_store_dwordx4 {v(16,4)}, v4, s[4:7], s41 offen
    s_nop 1""")
    A(f"""    v_mov_b32 v16, -1
    v_mov_b32 v17, -1
    v_mov_b32 v18, -1
    v_mov_b32 v19, -1
    v_lshlrev_b32 v4, 4, v3""")
    def fill(base, nbytes):
        nchunk = nbytes // 16
        i = 0
        while i*8192 < nchunk:
            rem = nchunk - i*8192
            if rem >= 8192:
                A(f"    s_mov_b32 s41, {base + i*8192*16}\n    buffer_store_dwordx4 {v(16,4)}, v4, s[4:7], s41 offen")
            else:
                A(f"""    v_cmp_gt_u32 vcc, {rem}, v3
    v_mov_b32 v5, 0x7fff0000
    s_nop 0
    v_cndmask_b32 v5, v5, v4, vcc
    s_mov_b32 s41, {base + i*8192*16}
    buffer_store_dwordx4 {v(16,4)}, v5, s[4:7], s41 offen""")
            i += 1
    fill(WS_MEMF + MEM_SEG, 64*MEM_SEG)
    fill(WS_MEMX, 65*MEM_SEG)
    fill(WS_PM, 64*PM_SEG)
    A("    s_nop 1\n    v_mov_b32 v16, 0\n    v_mov_b32 v17, 0\n    v_mov_b32 v18, 0\n    v_mov_b32 v19, 0")
    fill(WS_CNT, 32768)
    A(f"""    v_and_b32 v5, 7, v3                   ; m
    v_bfe_u32 v6, v3, 3, 1                ; hs
    v_bfe_u32 v7, v3, 4, 2                ; gA
    v_lshrrev_b32 v8, 6, v3               ; kappa
    v_mul_u32_u24 v5, 896, v5
    v_lshlrev_b32 v8, 7, v8
    v_lshlrev_b32 v7, 5, v7
    v_lshlrev_b32 v6, 2, v6
    v_add3_u32 v5, v5, v8, v7
    v_add_u32 v5, v5, v6
    v_cmp_gt_u32 vcc, 448, v3
    v_mov_b32 v9, 0x7fff0000
    s_nop 0
    v_cndmask_b32 v5, v9, v5, vcc
    v_cndmask_b32 v9, v9, v4, vcc
    buffer_load_dword v16, v5, s[20:23], 0 offen
    buffer_load_dword v17, v5, s[20:23], 0 offen offset:8
    buffer_load_dword v18, v5, s[20:23], 0 offen offset:16
    buffer_load_dword v19, v5, s[20:23], 0 offen offset:24
    s_waitcnt vmcnt(0)
    s_mov_b32 s41, {WS_MEMF}
    buffer_store_dwordx4 {v(16,4)}, v9, s[4:7], s41 offen
{n}_end:
    s_endpgm""")
```

```python
from asmlib import *
from layout import *

S_SRD   = 4
S_STEP  = 8
S_WAVE  = 9
S_ROLE  = 10
S_IDX   = 11
S_DBG   = 12
S_MODE  = 16
S_TO    = 17
S_OUT   = 20
S_T0    = 24
NCHAIN = 30
LDS_ROLE = 163840 - 16
POLL_BUDGET = 1 << 22

def k2_prologue(A, name):
    A(f"""
{name}:
    s_cmp_ge_u32 s2, 256
    s_cbranch_scc1 {name}_end
    s_load_dwordx2 s[24:25], s[0:1], 64
    s_load_dwordx2 s[26:27], s[0:1], 72
    s_load_dwordx2 s[28:29], s[0:1], 56
    s_getreg_b32 s3, hwreg(HW_REG_XCC_ID)
    s_and_b32 s3, s3, 7
    v_lshrrev_b32 v1, 6, v0
    v_and_b32 v0, 63, v0
    s_nop 0
    v_readfirstlane_b32 s{S_WAVE}, v1
    s_waitcnt lgkmcnt(0)
    s_mov_b32 s4, s26
    s_mov_b32 s5, s27
    s_mov_b32 s6, 0x10000000
    s_mov_b32 s7, 0x00020000
    s_mov_b32 s12, s24
    s_mov_b32 s13, s25
    s_mov_b32 s14, 256
    s_mov_b32 s15, 0x00020000
    s_mov_b32 s20, s28
    s_mov_b32 s21, s29
    s_mov_b32 s22, {S*DM*2}
    s_mov_b32 s23, 0x00020000
    s_mov_b32 s{S_TO}, {POLL_BUDGET}
    s_cmp_lg_u32 s{S_WAVE}, 0
    s_cbranch_scc1 {name}_wait_role
    v_mov_b32 v2, 1
    s_lshl_b32 s24, s3, 2
    v_mov_b32 v3, s24
    s_mov_b64 exec, 1
    buffer_atomic_add v2, v3, s[12:15], 0 offen sc0
    s_waitcnt vmcnt(0)
    v_readfirstlane_b32 s25, v2
    s_mov_b64 exec, -1
    v_lshlrev_b32 v3, 2, v0
    v_and_b32 v3, 28, v3
{name}_reg_poll:
    buffer_load_dword v4, v3, s[12:15], 0 offen sc1
    s_waitcnt vmcnt(0)
""")
    for x in range(8):
        A(f"    v_readlane_b32 s{32+x}, v4, {x}")
    A("    s_nop 0")
    A("    s_add_u32 s26, s32, s33")
    for x in range(2, 8):
        A(f"    s_add_u32 s26, s26, s{32+x}")
    A(f"""
    s_cmp_ge_u32 s26, 256
    s_cbranch_scc1 {name}_reg_done
    s_cmp_eq_u32 s{S_TO}, 0
    s_cbranch_scc1 {name}_reg_done
    s_sub_u32 s{S_TO}, s{S_TO}, 1
    s_branch {name}_reg_poll
{name}_reg_done:
    s_mov_b32 s27, 99
""")
    for x in range(7, -1, -1):
        A(f"    s_cmp_ge_u32 s{32+x}, {NCHAIN}")
        A(f"    s_cselect_b32 s27, {x}, s27")
    A("    s_mov_b32 s28, 0\n    s_mov_b32 s29, 0\n    s_mov_b32 s30, 0")
    for x in range(8):
        A(f"""    s_cmp_gt_u32 s3, {x}
    s_cselect_b32 s31, s{32+x}, 0
    s_add_u32 s28, s28, s31
    s_cmp_eq_u32 s27, {x}
    s_cselect_b32 s31, 0, s31
    s_cselect_b32 s30, s{32+x}, s30
    s_add_u32 s29, s29, s31""")
    A(f"""
    s_cmp_eq_u32 s27, 99
    s_cbranch_scc1 {name}_slow_roles
    s_mov_b32 s{S_MODE}, 0
    s_cmp_eq_u32 s3, s27
    s_cbranch_scc1 {name}_on_chain_die
    s_add_u32 s31, s29, s25             ; q
    s_branch {name}_side_role
{name}_on_chain_die:
    s_cmp_lt_u32 s25, {NCHAIN}
    s_cbranch_scc1 {name}_chain_role_rank
    s_sub_u32 s31, 256, s30
    s_add_u32 s31, s31, s25
    s_sub_u32 s31, s31, {NCHAIN}
    s_branch {name}_side_role
{name}_chain_role_rank:
    s_mov_b32 s31, s25
    s_branch {name}_chain_role
{name}_slow_roles:
    s_mov_b32 s{S_MODE}, 1
    s_add_u32 s31, s28, s25
    s_cmp_lt_u32 s31, {NCHAIN}
    s_cbranch_scc1 {name}_chain_role
    s_sub_u32 s31, s31, {NCHAIN}
{name}_side_role:
    s_mov_b32 s{S_ROLE}, 5
    s_mov_b32 s{S_IDX}, 0
    s_cmp_lt_u32 s31, 212
    s_cselect_b32 s{S_ROLE}, 4, s{S_ROLE}
    s_cmp_lt_u32 s31, 128
    s_cselect_b32 s{S_ROLE}, 3, s{S_ROLE}
    s_cmp_lt_u32 s31, 64
    s_cselect_b32 s{S_ROLE}, 2, s{S_ROLE}
    s_sub_u32 s{S_IDX}, s31, 128
    s_cmp_ge_u32 s31, 224
    s_cbranch_scc0 {name}_not_helper
    s_mov_b32 s{S_ROLE}, 6
    s_sub_u32 s{S_IDX}, s31, 224
    s_branch {name}_role_done
{name}_not_helper:
    s_cmp_lt_u32 s31, 128
    s_cbranch_scc0 {name}_role_done
    s_and_b32 s{S_IDX}, s31, 63
    s_branch {name}_role_done
{name}_chain_role:
    s_mov_b32 s{S_ROLE}, 0
    s_mov_b32 s{S_IDX}, s31
    s_cmp_lt_u32 s31, 16
    s_cbranch_scc1 {name}_role_done
    s_mov_b32 s{S_ROLE}, 1
    s_sub_u32 s{S_IDX}, s31, 16
{name}_role_done:
    s_lshl_b32 s24, s{S_IDX}, 8
    s_or_b32 s24, s24, s{S_ROLE}
    s_lshl_b32 s25, s{S_MODE}, 16
    s_or_b32 s24, s24, s25
    v_mov_b32 v2, s24
    v_mov_b32 v3, {LDS_ROLE}
    ds_write_b32 v3, v2
    s_waitcnt lgkmcnt(0)
{name}_wait_role:
    s_barrier
    v_mov_b32 v3, {LDS_ROLE}
    ds_read_b32 v2, v3
    s_waitcnt lgkmcnt(0)
    v_readfirstlane_b32 s24, v2
    s_nop 1
    s_and_b32 s{S_ROLE}, s24, 255
    s_bfe_u32 s{S_IDX}, s24, 0x80008
    s_lshr_b32 s{S_MODE}, s24, 16
""")

OUTLINE = []
def poll_tail(A, lab_poll, lab_go):
    A(f"    s_cbranch_vccnz {lab_poll}_retry")
    A(f"{lab_go}:")
    OUTLINE.append(f"""{lab_poll}_retry:
    s_cmp_eq_u32 s{S_TO}, 0
    s_cbranch_scc1 {lab_go}
    s_sub_u32 s{S_TO}, s{S_TO}, 1
    s_branch {lab_poll}""")
def flush_outline(A):
    for blk in OUTLINE: A(blk)
    OUTLINE.clear()

S_PROF = 58
STAMPS = None
TIMER = 's_memrealtime'
class Prof:
    def __init__(self, on): self.on = on; self.n = 0
    def init(self, A, slot_sgpr_expr):
        if not self.on: return
        A(f"""    s_lshl_b32 s{S_PROF}, {slot_sgpr_expr}, 2
    s_add_u32 s{S_PROF}, s{S_PROF}, s{S_WAVE}
    s_lshl_b32 s{S_PROF}, s{S_PROF}, 11
    s_add_u32 s{S_PROF}, s{S_PROF}, {WS_PROF}""")
    def stamp(self, A, k):
        if self.on and (STAMPS is None or k in STAMPS): A(f"    {TIMER} s[{60+2*k}:{61+2*k}]"); self.n = max(self.n, k+1)
    def flush(self, A, vt):
        if not self.on: return
        A("    s_waitcnt lgkmcnt(0)")
        A(f"    v_mov_b32 v{vt+1}, s{S_PROF}")
        for k in range(self.n):
            A(f"    v_mov_b32 v{vt}, s{60+2*k}")
            A(f"    buffer_store_dword v{vt}, v{vt+1}, s[4:7], 0 offen offset:{4*k}")
            A("    s_nop 1")
        A(f"    s_add_u32 s{S_PROF}, s{S_PROF}, 32")
```

```python
from asmlib import *
from layout import *
from k2_common import *
V_POLL=2; V_L16=3; V_L128=4; V_F=8; V_T=16; V_J=18; V_C=19; V_CA=20
S_MEM=44; S_MEMX=45; S_DF=46; S_XS=47; S_PM=48; S_CNT=49; S_MN=50
def helper_role(A, prof=False):
    L = "hp"
    A(f"""{L}_start:
    v_lshlrev_b32 v{V_L16}, 4, v0
    v_lshlrev_b32 v{V_L128}, 7, v0
    s_lshl_b32 s24, s{S_WAVE}, 1
    s_min_u32 s24, s24, 5
    s_lshl_b32 s25, s24, 10
    v_add_u32 v{V_POLL}, s25, v{V_L16}
    s_mov_b32 s{S_STEP}, 0
    s_mov_b32 s{S_MEM}, {WS_MEMF}
    s_mov_b32 s{S_MEMX}, {WS_MEMX}
    s_lshl_b32 s24, s{S_IDX}, 2
    s_add_u32 s24, s24, s{S_WAVE}
    s_mul_i32 s24, s24, {448*128}
    s_add_u32 s{S_DF}, s24, {WS_DF + 2*NJ*DF_SJ}
    s_mov_b32 s{S_CNT}, {CNT_D + 2*128}
    s_lshl_b32 s24, s{S_WAVE}, 13
    s_add_u32 s{S_XS}, s24, {WS_XS + 2*XS_SEG}
    s_mov_b32 s{S_PM}, {WS_PM + 2*PM_SEG}
    s_cmp_eq_u32 s{S_WAVE}, 2
    s_cselect_b32 s{S_PM}, {WS_MEMF + 3*MEM_SEG}, s{S_PM}
    s_cmp_eq_u32 s{S_WAVE}, 1
    s_cselect_b32 s24, 8192, 0
    s_add_u32 s{S_PM}, s{S_PM}, s24
    s_mov_b32 s{S_MN}, {PM_SEG}
    s_cmp_eq_u32 s{S_WAVE}, 2
    s_cselect_b32 s{S_MN}, {MEM_SEG}, s{S_MN}
    s_mov_b32 s24, 64
    s_cmp_eq_u32 s{S_WAVE}, 1
    s_cselect_b32 s24, 16, s24
    s_cmp_eq_u32 s{S_WAVE}, 2
    s_cselect_b32 s24, 56, s24
    s_cmp_eq_u32 s{S_WAVE}, 3
    s_cselect_b32 s24, 0, s24
    v_mov_b32 v{V_T}, 0x7fff0000
    v_cmp_gt_u32 vcc, s24, v0
    s_nop 1
    v_cndmask_b32 v{V_C}, v{V_T}, v{V_L128}, vcc
{L}_loop:
{L}_poll:
    buffer_load_dwordx4 {v(V_F,4)}, v{V_POLL}, s[4:7], s{S_MEM} offen sc1
    buffer_load_dwordx4 {v(V_F+4,4)}, v{V_POLL}, s[4:7], s{S_MEM} offen offset:1024 sc1
    s_waitcnt vmcnt(0)
    v_max3_u32 v{V_T}, v{V_F}, v{V_F+1}, v{V_F+2}
    v_max3_u32 v{V_T+1}, v{V_F+3}, v{V_F+4}, v{V_F+5}
    v_max3_u32 v{V_T}, v{V_T}, v{V_F+6}, v{V_F+7}
    v_max_u32 v{V_T}, v{V_T}, v{V_T+1}
    v_cmp_eq_u32 vcc, -1, v{V_T}""")
    poll_tail(A, f"{L}_poll", f"{L}_go")
    A(f"""    s_cmp_lg_u32 s{S_IDX}, 0
    s_cbranch_scc1 {L}_noexp
    buffer_store_dwordx4 {v(V_F,4)}, v{V_POLL}, s[4:7], s{S_MEMX} offen sc1
    buffer_store_dwordx4 {v(V_F+4,4)}, v{V_POLL}, s[4:7], s{S_MEMX} offen offset:1024 sc1
{L}_noexp:
    s_cmp_gt_u32 s{S_STEP}, 60
    s_cbranch_scc1 {L}_next
    s_cmp_lg_u32 s{S_IDX}, 0
    s_cbranch_scc1 {L}_h1
    buffer_load_dword v{V_J}, v{V_L128}, s[4:7], s{S_XS} offen sc1
    s_branch {L}_h01
{L}_h1:
    buffer_load_dword v{V_J}, v{V_C}, s[4:7], s{S_PM} offen sc1
{L}_h01:
    v_mov_b32 v{V_CA}, s{S_CNT}
{L}_cnt:
    buffer_load_dword v{V_T}, v{V_CA}, s[4:7], 0 offen sc1
    s_waitcnt vmcnt(0)
    v_readfirstlane_b32 s24, v{V_T}
    s_nop 0
    s_cmp_ge_u32 s24, 16
    s_cbranch_scc1 {L}_cnt_ok
    s_cmp_eq_u32 s{S_TO}, 0
    s_cbranch_scc1 {L}_cnt_ok
    s_sub_u32 s{S_TO}, s{S_TO}, 1
    s_branch {L}_cnt
{L}_cnt_ok:""")
    for i in range(7):
        A(f"    s_add_u32 s24, s{S_DF}, {i*8192}")
        A(f"    buffer_load_dword v{V_J}, v{V_L128}, s[4:7], s24 offen sc1")
    A(f"""{L}_next:
    s_add_u32 s{S_STEP}, s{S_STEP}, 1
    s_add_u32 s{S_MEM}, s{S_MEM}, {MEM_SEG}
    s_add_u32 s{S_MEMX}, s{S_MEMX}, {MEM_SEG}
    s_add_u32 s{S_DF}, s{S_DF}, {NJ*DF_SJ}
    s_add_u32 s{S_XS}, s{S_XS}, {XS_SEG}
    s_add_u32 s{S_PM}, s{S_PM}, s{S_MN}
    s_add_u32 s{S_CNT}, s{S_CNT}, 128
    s_cmp_lt_u32 s{S_STEP}, 64
    s_cbranch_scc1 {L}_loop
    s_waitcnt vmcnt(0)
    s_endpgm""")
    flush_outline(A)
```

```python
from asmlib import *
from layout import *
from k2_common import *

L_XS = 0
L_MEM = 65536
L_PART = 73728
LOG2E_16 = 0x3DB8AA3B

V_IDX=1; V_POLL=2; V_STW=3; V_RX=4; V_RY=5; V_RZ=6; V_XS=7
V_MB0=8; V_MB1A=9; V_MB1B=10; V_MB1C=11; V_MB1D=12
V_PW=13; V_PR=14; V_PST=15; V_L16=16
V_SEL=20
V_F=24
V_ACC=52
V_TA=80
V_SACC=84
V_B0=96; V_B1=104
V_T=112
V_B2=V_F
S_MEM=44; S_PM=45; S_XSN=46; S_XSL=47; S_C=48; S_KAP=50


def W(tau, phi):
    sig = tau*7 + phi
    if sig < 32: return a(8*sig, 8)
    return v(120 + 8*(sig-32), 8)
def Wq(tau, phi, half):
    sig = tau*7 + phi
    if sig < 32: return a(8*sig + 4*half, 4)
    return v(120 + 8*(sig-32) + 4*half, 4)
def F(phi): return v(V_F + 4*phi, 4)
def ACC(tau): return v(V_ACC + 4*tau, 4)

def score_role(A, mode, prof=False):
    L = f"sc{mode}"
    SC = ' sc1' if mode else ''
    A(f"{L}_start:")
    A(f"""
    v_lshrrev_b32 v17, 4, v0              ; g
    v_and_b32 v18, 15, v0                 ; n
    v_bfe_u32 v19, v0, 3, 1
    v_mul_u32_u24 v{V_IDX}, 0xaaaa, v19
    v_add_u32 v{V_IDX}, 0x4444, v{V_IDX}
    v_lshlrev_b32 v{V_L16}, 4, v0
    s_lshl_b32 s24, s{S_WAVE}, 1
    s_min_u32 s24, s24, 5
    s_lshl_b32 s25, s24, 10
    v_add_u32 v{V_POLL}, s25, v{V_L16}
    v_add_u32 v{V_STW}, {L_MEM}, v{V_POLL}
    s_lshl_b32 s{S_KAP+0}, s24, 11
    s_add_u32 s{S_KAP+1}, s{S_KAP+0}, 2048
    s_cmp_eq_u32 s{S_WAVE}, 0
    s_cselect_b32 s25, 2, 0
    s_lshl_b32 s{S_KAP+2}, s25, 11
    s_add_u32 s{S_KAP+3}, s{S_KAP+2}, 2048
    s_lshl_b32 s25, s25, 10
    s_add_u32 s25, s25, {L_MEM}
    v_add_u32 v{V_RX}, s25, v{V_L16}
    s_cmp_lt_u32 s{S_WAVE}, 2
    s_cselect_b32 s25, 4, 2
    s_lshl_b32 s{S_KAP+4}, s25, 11
    s_add_u32 s{S_KAP+5}, s{S_KAP+4}, 2048
    s_lshl_b32 s25, s25, 10
    s_add_u32 s25, s25, {L_MEM}
    v_add_u32 v{V_RY}, s25, v{V_L16}
    s_cmp_eq_u32 s{S_WAVE}, 3
    s_cselect_b32 s25, 4, 6
    s_lshl_b32 s{S_KAP+6}, s25, 11
    s_lshl_b32 s25, s25, 10
    s_add_u32 s25, s25, {L_MEM}
    v_add_u32 v{V_RZ}, s25, v{V_L16}
    s_lshl_b32 s24, s{S_IDX}, 2
    s_add_u32 s24, s24, s{S_WAVE}
    s_mul_i32 s24, s24, {49*2048}
    s_add_u32 s24, s24, {WS_AF}
""")
    for tau in range(7):
        for phi in range(7):
            A(f"    s_add_u32 s25, s24, s{S_KAP+phi}")
            A(f"    buffer_load_dwordx4 {Wq(tau,phi,0)}, v{V_L16}, s[4:7], s25 offen")
            A(f"    buffer_load_dwordx4 {Wq(tau,phi,1)}, v{V_L16}, s[4:7], s25 offen offset:1024")
        if tau < 6: A(f"    s_add_u32 s24, s24, {7*2048}")
    A(f"""
    s_lshl_b32 s25, s{S_WAVE}, 13
    s_mov_b32 s{S_XSL}, s25
    s_add_u32 s{S_XSN}, s25, {WS_XS}
""")
    emit_xs_dma_plain(A)
    A(f"""
    s_add_u32 s{S_XSN}, s{S_XSN}, {XS_SEG}
    s_xor_b32 s{S_XSL}, s{S_XSL}, 32768
    s_lshl_b32 s25, s{S_WAVE}, 13
    v_add_u32 v{V_XS}, s25, v{V_L16}
    v_and_b32 v19, 7, v18                 ; m = n & 7
    v_lshlrev_b32 v19, 4, v19
    v_add_u32 v19, {L_MEM}, v19
    s_mul_i32 s25, s{S_WAVE}, {7*256}
    v_add_u32 v19, s25, v19               ; + 7w*256
    v_lshrrev_b32 v112, 1, v17            ; g>>1
    v_and_b32 v113, 1, v17                ; g&1
    v_lshlrev_b32 v114, 8, v112
    v_lshlrev_b32 v115, 3, v113
    v_add3_u32 v{V_MB0}, v19, v114, v115  ; u0: (7w + (g>>1))*256 + 8*(g&1)
    v_lshlrev_b32 v114, 3, v112
    v_add_u32 v114, 1024, v114
    v_lshlrev_b32 v115, 2, v112
    v_add_u32 v115, 1536, v115
    v_cmp_eq_u32 vcc, 1, v113
    s_nop 1
    v_cndmask_b32 v116, v114, v115, vcc
    v_add_u32 v{V_MB1A}, v19, v116
    v_mov_b32 v116, 4
    v_mov_b32 v117, 128
    v_cndmask_b32 v116, v116, v117, vcc   ; delta a->b
    v_add_u32 v{V_MB1B}, v{V_MB1A}, v116
    v_add_u32 v114, 256, v114
    v_add_u32 v115, 8, v115
    v_cndmask_b32 v117, v114, v115, vcc
    v_add_u32 v{V_MB1C}, v19, v117
    v_add_u32 v{V_MB1D}, v{V_MB1C}, v116
    v_lshlrev_b32 v114, 2, v113
    v_add_u32 v114, v114, v112
    v_lshlrev_b32 v114, 6, v114
    v_add_u32 v114, v114, v18
    s_lshl_b32 s25, s{S_WAVE}, 9
    v_add_u32 v114, s25, v114
    v_lshlrev_b32 v114, 2, v114
    v_add_u32 v{V_PW}, {L_PART}, v114
    v_lshrrev_b32 v114, 5, v0
    s_lshl_b32 s25, s{S_WAVE}, 1
    v_add_u32 v114, s25, v114             ; row
    v_and_b32 v115, 31, v0                ; kk
    v_lshlrev_b32 v116, 1, v115           ; 2kk
    v_add_u32 v117, 8, v116               ; 2kk+8
    v_cmp_gt_u32 vcc, 4, v115
    s_nop 1
    v_cndmask_b32 v117, v117, v116, vcc
    v_mov_b32 v118, 48
    v_cmp_gt_u32 vcc, 20, v115
    s_nop 1
    v_cndmask_b32 v117, v118, v117, vcc   ; slot
    v_lshlrev_b32 v118, 6, v114
    v_add_u32 v118, v118, v117
    v_lshlrev_b32 v118, 2, v118
    v_add_u32 v{V_PR}, {L_PART}, v118
    v_lshlrev_b32 v118, 4, v114
    v_lshlrev_b32 v119, 6, v114
    v_add_u32 v119, 112, v119
    v_cmp_gt_u32 s[26:27], 4, v115
    s_nop 1
    v_cndmask_b32 v118, v119, v118, s[26:27]
    v_lshlrev_b32 v119, 2, v115
    v_add_u32 v118, v118, v119
    v_mov_b32 v119, 0x7fff0000
    v_cndmask_b32 v{V_PST}, v119, v118, vcc
    v_and_b32 v114, 7, v18                ; jj
    v_lshlrev_b32 v115, 2, v113           ; 4*(g&1)
    v_sub_u32 v114, v114, v115
    v_and_b32 v115, 1, v114
    v_mov_b32 v116, 0x3f80
    v_mov_b32 v117, 0x3f800000
    v_cmp_eq_u32 vcc, 1, v115
    s_nop 1
    v_cndmask_b32 v116, v116, v117, vcc   ; value
    v_lshrrev_b32 v115, 1, v114
    v_lshrrev_b32 v117, 3, v18            ; j>>3
    v_lshlrev_b32 v117, 1, v117
    v_add_u32 v117, v117, v115
    v_cmp_gt_u32 vcc, 4, v114
    v_mov_b32 v115, 99
    s_nop 0
    v_cndmask_b32 v117, v115, v117, vcc
""")
    for d in range(4):
        A(f"""    v_cmp_eq_u32 vcc, {d}, v117
    s_nop 1
    v_cndmask_b32 v{V_SEL+d}, 0, v116, vcc""")
    A(f"""
    v_mov_b32 v114, 0
    v_mov_b32 v115, 0
    v_lshlrev_b32 v116, 3, v0
    v_add_u32 v116, {L_MEM + 7168}, v116
    ds_write_b64 v116, v[114:115]
    v_lshrrev_b32 v116, 3, v0
    v_lshlrev_b32 v116, 6, v116
    v_and_b32 v117, 7, v0
    v_lshlrev_b32 v117, 1, v117
    v_add3_u32 v116, v116, v117, 48
    s_lshl_b32 s25, s{S_WAVE}, 9
    v_add_u32 v116, s25, v116
    v_lshlrev_b32 v116, 2, v116
    v_add_u32 v116, {L_PART}, v116
    s_cmp_eq_u32 s{S_WAVE}, 0
    s_cselect_b32 s25, 0xff800000, 0
    v_mov_b32 v114, s25
    v_mov_b32 v115, s25
    ds_write_b64 v116, v[114:115]
    s_mov_b32 s{S_C}, {LOG2E_16}
    s_mov_b32 s{S_STEP}, 0
    s_mov_b32 s{S_MEM}, {WS_MEMF}
    s_mul_i32 s{S_PM}, s{S_IDX}, 640
    s_add_u32 s{S_PM}, s{S_PM}, {WS_PM}
    s_waitcnt vmcnt(0) lgkmcnt(0)
    s_barrier
""")
    gstamp(A, 1, 2, 118)
    PR = Prof(prof); PR.init(A, f's{S_IDX}')
    if prof: A("    s_memtime s[80:81]\n    s_memrealtime s[82:83]\n    s_waitcnt lgkmcnt(0)")
    A(f"{L}_loop:")
    for r in range(28): A(f"    v_mov_b32 v{V_ACC+r}, 0")
    for r in range(12): A(f"    v_mov_b32 v{V_SACC+r}, 0")
    A(f"{L}_poll:")
    A(f"""    buffer_load_dwordx4 {F(0)}, v{V_POLL}, s[4:7], s{S_MEM} offen sc1
    buffer_load_dwordx4 {F(1)}, v{V_POLL}, s[4:7], s{S_MEM} offen offset:1024 sc1
    s_waitcnt vmcnt(0)
    ds_write_b128 v{V_STW}, {F(0)}
    ds_write_b128 v{V_STW}, {F(1)} offset:1024
    v_max3_u32 v{V_T}, v{V_F}, v{V_F+1}, v{V_F+2}
    v_max3_u32 v{V_T+1}, v{V_F+3}, v{V_F+4}, v{V_F+5}
    v_max3_u32 v{V_T}, v{V_T}, v{V_F+6}, v{V_F+7}
    v_max_u32 v{V_T}, v{V_T}, v{V_T+1}
    v_cmp_eq_u32 vcc, -1, v{V_T}""")
    poll_tail(A, f"{L}_poll", f"{L}_go")
    def sm(tau, phi): A(f"    v_smfmac_f32_16x16x64_bf16 {ACC(tau)}, {F(phi)}, {W(tau,phi)}, v{V_IDX}")
    PR.stamp(A, 0)
    for tau in range(7): sm(tau, 0)
    A("    s_waitcnt lgkmcnt(0)\n    s_barrier")
    PR.stamp(A, 1)
    A(f"""    ds_read_b128 {F(2)}, v{V_RX}
    ds_read_b128 {F(3)}, v{V_RX} offset:1024
    ds_read_b128 {F(4)}, v{V_RY}
    ds_read_b128 {F(5)}, v{V_RY} offset:1024
    ds_read_b128 {F(6)}, v{V_RZ}""")
    for tau in range(7): sm(tau, 1)
    dma = xs_dma_list()
    B0, B1, B2 = V_B0, V_B1, V_B2
    def xsread(dst, u, T):
        off = (u*2 + T)*2048
        return [f"    ds_read_b128 {v(dst,4)}, v{V_XS} offset:{off}", f"    ds_read_b128 {v(dst+4,4)}, v{V_XS} offset:{off+1024}"]
    def memread0(dst):
        return [f"    ds_read2_b32 {v(dst,2)}, v{V_MB0} offset0:0 offset1:32",
                f"    ds_read2_b32 {v(dst+2,2)}, v{V_MB0} offset0:1 offset1:33",
                f"    ds_read2_b32 {v(dst+4,2)}, v{V_MB0} offset0:128 offset1:160",
                f"    ds_read2_b32 {v(dst+6,2)}, v{V_MB0} offset0:129 offset1:161"]
    def memread1(dst):
        return [f"    ds_read2_b32 {v(dst,2)}, v{V_MB1A} offset0:0 offset1:32",
                f"    ds_read2_b32 {v(dst+2,2)}, v{V_MB1B} offset0:0 offset1:32",
                f"    ds_read2_b32 {v(dst+4,2)}, v{V_MB1C} offset0:0 offset1:32",
                f"    ds_read2_b32 {v(dst+6,2)}, v{V_MB1D} offset0:0 offset1:32"]
    def cvt(dst, src): return [f"    v_cvt_pk_bf16_f32 v{dst}, v{src}, v{src+1}", f"    v_cvt_pk_bf16_f32 v{dst+1}, v{src+2}, v{src+3}"]
    def tm(p):
        return [f"    v_mfma_f32_16x16x32_bf16 {ACC(2*p)}, {v(V_TA,4)}, {v(V_SEL,4)}, 0"]
    SA0 = V_ACC + 4*1; SA1 = V_ACC + 4*3
    def ssm(tile, sa, b): return [f"    v_smfmac_f32_16x16x64_bf16 {v(V_SACC+4*tile,4)}, {v(sa,4)}, {v(b,8)}, v{V_IDX}"]
    side = {}
    def put(n, l): side.setdefault(n, []).extend(l)
    x0 = xsread(B0,0,0); x1 = xsread(B1,0,1); m0 = memread0(B2)
    put(4, x0); put(5, x1); put(6, m0[:2]); put(8, m0[2:])
    put(7, cvt(V_TA, V_ACC+0))
    put(12, cvt(V_TA+2, V_ACC+4))
    put(13, tm(0))
    put(16, cvt(SA0, V_ACC+0))
    put(17, cvt(V_TA, V_ACC+8))
    put(22, cvt(V_TA+2, V_ACC+12))
    put(23, tm(1))
    put(26, cvt(SA0+2, V_ACC+8))
    put(27, cvt(V_TA, V_ACC+16))
    put(28, ["    s_waitcnt lgkmcnt(0)"] + ssm(1, SA0, B0))
    put(29, ssm(2, SA0, B1))
    put(30, ssm(0, SA0, B2))
    put(31, xsread(B0,1,0)); put(32, xsread(B1,1,1))
    m1 = memread1(B2)
    put(32, cvt(V_TA+2, V_ACC+20))
    put(33, m1[:2]); put(34, m1[2:])
    put(34, tm(2))
    put(0, dma[0:2]); put(4, [dma[2]]); put(8, [dma[3]]); put(12, [dma[4]])
    put(15, dma[5:8]); put(16, [dma[8]]); put(20, [dma[9]]); put(24, [dma[10]]); put(28, [dma[11]])
    n = 0
    for tau in range(7):
        for phi in range(2, 7):
            if tau == 0:
                A(f"    s_waitcnt lgkmcnt({6-phi})")
            sm(tau, phi)
            for ln in side.get(n, []): A(ln)
            n += 1
    PR.stamp(A, 2)
    A("\n".join(cvt(V_T, V_ACC+24)))
    A(f"    v_mfma_f32_16x16x16_bf16 {ACC(6)}, {v(V_T,2)}, {v(V_SEL,2)}, 0")
    A("\n".join(cvt(SA1, V_ACC+16)))
    A("\n".join(cvt(SA1+2, V_ACC+24)))
    A("    s_waitcnt lgkmcnt(0)")
    A("\n".join(ssm(0, SA1, B2) + ssm(1, SA1, B0) + ssm(2, SA1, B1)))
    for T in range(3):
        b = V_SACC + 4*T
        A(f"""    v_permlane32_swap_b32 v{b}, v{b+1}
    v_permlane32_swap_b32 v{b+2}, v{b+3}
    v_add_f32 v{b}, v{b}, v{b+1}
    v_add_f32 v{b+2}, v{b+2}, v{b+3}
    ds_write2_b32 v{V_PW}, v{b}, v{b+2} offset0:{16*T} offset1:{16*T+128}""")
    R = V_F
    PR.stamp(A, 3)
    A("    s_waitcnt lgkmcnt(0)\n    s_barrier")
    PR.stamp(A, 4)
    A(f"""    ds_read2st64_b64 {v(R,4)}, v{V_PR} offset0:0 offset1:4
    ds_read2st64_b64 {v(R+4,4)}, v{V_PR} offset0:8 offset1:12
    s_waitcnt lgkmcnt(0)
    v_pk_add_f32 {v(R,2)}, {v(R,2)}, {v(R+2,2)}
    v_pk_add_f32 {v(R+4,2)}, {v(R+4,2)}, {v(R+6,2)}
    v_pk_add_f32 {v(R,2)}, {v(R,2)}, {v(R+4,2)}
    v_max_f32 v{R+2}, v{R}, v{R+1}""")
    def allreduce(op, r, t):
        for sh in (8, 4, 2, 1):
            A(f"    {op}_dpp v{r}, v{r}, v{r} row_ror:{sh} row_mask:0xf bank_mask:0xf")
        A(f"""    v_mov_b32 v{t}, v{r}
    v_permlane16_swap_b32 v{r}, v{t}
    {op} v{r}, v{r}, v{t}""")
    allreduce("v_max_f32", R+2, R+3)
    A(f"""    v_mul_f32 v{R+2}, s{S_C}, v{R+2}
    v_fma_f32 v{R}, v{R}, s{S_C}, -v{R+2}
    v_fma_f32 v{R+1}, v{R+1}, s{S_C}, -v{R+2}
    v_exp_f32 v{R}, v{R}
    v_exp_f32 v{R+1}, v{R+1}
    v_add_f32 v{R+2}, v{R}, v{R+1}""")
    allreduce("v_add_f32", R+2, R+3)
    A(f"""    v_rcp_f32 v{R+2}, v{R+2}
    v_mul_f32 v{R}, v{R}, v{R+2}
    v_mul_f32 v{R+1}, v{R+1}, v{R+2}
    v_cvt_pk_bf16_f32 v{R}, v{R}, v{R+1}
    v_min_u32 v{R}, 0xfffffffe, v{R}
    buffer_store_dword v{R}, v{V_PST}, s[4:7], s{S_PM} offen{SC}""")
    PR.stamp(A, 5)
    PR.flush(A, R+4)
    A(f"""    s_add_u32 s{S_STEP}, s{S_STEP}, 1
    s_add_u32 s{S_MEM}, s{S_MEM}, {MEM_SEG}
    s_add_u32 s{S_PM}, s{S_PM}, {PM_SEG}
    s_add_u32 s{S_XSN}, s{S_XSN}, {XS_SEG}
    s_xor_b32 s{S_XSL}, s{S_XSL}, 32768
    v_xor_b32 v{V_XS}, 32768, v{V_XS}
    s_cmp_lt_u32 s{S_STEP}, 63
    s_cbranch_scc1 {L}_loop""")
    if prof:
        A(f"""    s_memtime s[84:85]
    s_memrealtime s[86:87]
    s_waitcnt lgkmcnt(0)
    s_sub_u32 s84, s84, s80
    s_sub_u32 s86, s86, s82
    v_mov_b32 v24, s84
    v_mov_b32 v25, s86
    v_mov_b32 v26, s{S_PROF}
    buffer_store_dwordx2 v[24:25], v26, s[4:7], 0 offen""")
    gstamp(A, 1, 3, 118)
    A("    s_endpgm")
    flush_outline(A)

def xs_dma_list():
    l = [f"    s_mov_b32 m0, s{S_XSL}"]
    for i in range(4):
        l.append(f"    buffer_load_dwordx4 v{V_L16}, s[4:7], s{S_XSN} offen offset:{1024*i} lds")
    l.append(f"    s_add_u32 s24, s{S_XSL}, 4096")
    l.append(f"    s_mov_b32 m0, s24")
    l.append(f"    s_add_u32 s25, s{S_XSN}, 4096")
    for i in range(4):
        l.append(f"    buffer_load_dwordx4 v{V_L16}, s[4:7], s25 offen offset:{1024*i} lds")
    return l
def emit_xs_dma_plain(A):
    for ln in xs_dma_list(): A(ln)
```

```python
from asmlib import *
from layout import *
from k2_common import *

def W8(sig): return a(8*sig, 8) if sig < 32 else v(120 + 8*(sig-32), 8)
def W4(sig, half): return a(8*sig+4*half, 4) if sig < 32 else v(120 + 8*(sig-32) + 4*half, 4)

S_H=44; S_GRP=45; S_SEG=46; S_XG=47; S_XL=48; S_I=49; S_A0=50; S_A1=51; S_A2=52; S_PREV=53; S_W7=54
V_L16=1; V_ONE=2; V_CA=3

def head_group(A):
    A(f"""    s_and_b32 s{S_H}, s{S_IDX}, 7
    s_lshr_b32 s24, s{S_IDX}, 5
    s_lshl_b32 s24, s24, 3
    s_add_u32 s{S_H}, s{S_H}, s24
    s_bfe_u32 s{S_GRP}, s{S_IDX}, 0x20003
    v_lshlrev_b32 v{V_L16}, 4, v0
    v_mov_b32 v{V_ONE}, 1
    s_mul_i32 s{S_W7}, s{S_WAVE}, 7168""")

def xf_dma(sx):
    l = [f"    s_add_u32 s24, s{S_XL}, s{S_W7}", "    s_mov_b32 m0, s24", f"    s_add_u32 s25, {sx}, s{S_W7}"]
    for i in range(4): l.append(f"    buffer_load_dwordx4 v{V_L16}, s[4:7], s25 offen offset:{1024*i} lds")
    l += ["    s_add_u32 s24, s24, 4096", "    s_mov_b32 m0, s24", "    s_add_u32 s25, s25, 4096"]
    for i in range(3): l.append(f"    buffer_load_dwordx4 v{V_L16}, s[4:7], s25 offen offset:{1024*i} lds")
    return l

def signal(A, L, tag, cnt_base, sseg):
    A(f"""    s_cmp_lg_u32 s{S_WAVE}, 0
    s_cbranch_scc1 {L}_nosig{tag}
    s_lshl_b32 s24, {sseg}, 7
    s_add_u32 s24, s24, {cnt_base}
    v_mov_b32 v{V_CA}, s24
    s_mov_b64 exec, 1
    buffer_atomic_add v{V_ONE}, v{V_CA}, s[4:7], 0 offen
    s_mov_b64 exec, -1
{L}_nosig{tag}:""")

def wait_counter(A, L, tag, cnt_base, sseg, vt, target=16):
    A(f"""    s_lshl_b32 s24, {sseg}, 7
    s_add_u32 s24, s24, {cnt_base}
    v_mov_b32 v{vt+1}, s24
{L}_wc{tag}:
    buffer_load_dword v{vt}, v{vt+1}, s[4:7], 0 offen sc1
    s_waitcnt vmcnt(0)
    v_readfirstlane_b32 s25, v{vt}
    s_nop 0
    s_cmp_ge_u32 s25, {target}
    s_cbranch_scc1 {L}_wc{tag}_go
    s_cmp_eq_u32 s{S_TO}, 0
    s_cbranch_scc1 {L}_wc{tag}_go
    s_sub_u32 s{S_TO}, s{S_TO}, 1
    s_sleep 2
    s_branch {L}_wc{tag}
{L}_wc{tag}_go:""")

def dp_role(A, prof=False):
    L = "dp"
    V_XA=4; V_IDX=5; V_UO=6; V_UO6=7
    V_ACC=8
    V_X=64
    V_T=80
    V_F=88
    def ACC(t, tt): return V_ACC + (t*2+tt)*4
    A(f"{L}_start:")
    head_group(A)
    A(f"""    v_lshrrev_b32 v8, 4, v0               ; g'
    v_and_b32 v9, 15, v0                  ; i'
    v_bfe_u32 v10, v9, 3, 1
    v_lshlrev_b32 v10, 4, v10
    v_bfe_u32 v11, v9, 1, 1
    v_lshlrev_b32 v11, 3, v11
    v_bfe_u32 v12, v9, 2, 1
    v_lshlrev_b32 v12, 2, v12
    v_and_b32 v13, 1, v9
    v_add3_u32 v10, v10, v11, v12
    v_add_u32 v10, v10, v13
    v_lshlrev_b32 v10, 4, v10
    v_lshlrev_b32 v11, 9, v8
    v_add_u32 v{V_XA}, v10, v11
    v_bfe_u32 v10, v0, 3, 1
    v_mul_u32_u24 v{V_IDX}, 0xaaaa, v10
    v_add_u32 v{V_IDX}, 0x4444, v{V_IDX}
    v_lshrrev_b32 v10, 5, v0
    v_lshlrev_b32 v10, 8, v10
    v_lshlrev_b32 v11, 4, v9
    v_and_b32 v12, 1, v8
    v_lshlrev_b32 v12, 3, v12
    v_add3_u32 v{V_UO}, v10, v11, v12
    v_mov_b32 v10, 0x7fff0000
    v_cmp_gt_u32 vcc, 32, v0
    s_nop 1
    v_cndmask_b32 v{V_UO6}, v10, v{V_UO}, vcc
""")
    for t in range(7):
        A(f"""    s_mul_i32 s24, s{S_WAVE}, 7
    s_add_u32 s24, s24, {t}
    s_lshr_b32 s25, s24, 1
    s_and_b32 s24, s24, 1
    s_lshl_b32 s25, s25, 4
    s_add_u32 s25, s25, s{S_H}
    s_lshl_b32 s25, s25, 1
    s_add_u32 s25, s25, s24
    s_mul_i32 s{60+t}, s25, 1024
    s_mul_i32 s25, s25, {7*2048}
    s_add_u32 s25, s25, {WS_CF}""")
        for k in range(7):
            A(f"    buffer_load_dwordx4 {W4(t*7+k,0)}, v{V_L16}, s[4:7], s25 offen")
            A(f"    buffer_load_dwordx4 {W4(t*7+k,1)}, v{V_L16}, s[4:7], s25 offen offset:1024")
            if k < 6: A("    s_add_u32 s25, s25, 2048")
    A(f"""    s_mov_b32 s{S_SEG}, s{S_GRP}
    s_mul_i32 s{S_XG}, s{S_SEG}, {XF_SEG}
    s_add_u32 s{S_XG}, s{S_XG}, {WS_XF}
    s_mov_b32 s{S_XL}, 0""")
    A("\n".join(xf_dma(f"s{S_XG}")))
    A(f"""    s_mov_b32 s{S_I}, 0
{L}_loop:
    s_waitcnt vmcnt(0)
    s_barrier
    s_cmp_eq_u32 s{S_I}, 0
    s_cbranch_scc1 {L}_first""")
    signal(A, L, "a", CNT_D, f"s{S_PREV}")
    A(f"""{L}_first:
    s_cmp_eq_u32 s{S_I}, 15
    s_cbranch_scc1 {L}_nodma
    s_add_u32 s{S_XG}, s{S_XG}, {4*XF_SEG}
    s_xor_b32 s{S_XL}, s{S_XL}, 32768""")
    A("\n".join(xf_dma(f"s{S_XG}")))
    A(f"{L}_nodma:")
    def rd(kp, buf):
        return [f"    ds_read_b128 {v(V_X+8*buf,4)}, v{V_XA} offset:{2048*kp}", f"    ds_read_b128 {v(V_X+8*buf+4,4)}, v{V_XA} offset:{2048*kp+32}"]
    A("\n".join(rd(0, 0)))
    for kp in range(14):
        b = kp & 1
        A("    s_waitcnt lgkmcnt(0)")
        if kp < 13: A("\n".join(rd(kp+1, 1-b)))
        for t in range(7):
            for tt in range(2):
                c = "0" if kp == 0 else v(ACC(t,tt),4)
                A(f"    v_mfma_f32_16x16x32_bf16 {v(ACC(t,tt),4)}, {v(V_X+8*b+4*tt,4)}, {W4(t*7+(kp>>1), kp&1)}, {c}")
    A(f"""    s_mul_i32 s26, s{S_SEG}, {NJ*DF_SJ}
    s_add_u32 s26, s26, {WS_DF}""")
    for t in range(7):
        T = V_T + 4*(t&1)
        a0, a1 = ACC(t,0), ACC(t,1)
        A(f"""    v_cvt_pk_bf16_f32 v{T}, v{a0}, v{a0+1}
    v_cvt_pk_bf16_f32 v{T+1}, v{a0+2}, v{a0+3}
    v_cvt_pk_bf16_f32 v{T+2}, v{a1}, v{a1+1}
    v_cvt_pk_bf16_f32 v{T+3}, v{a1+2}, v{a1+3}
    s_add_u32 s27, s26, s{60+t}
    buffer_store_dwordx4 {v(T,4)}, v{V_L16}, s[4:7], s27 offen sc1""")
    A(f"""    s_mov_b32 s{S_PREV}, s{S_SEG}
    s_add_u32 s{S_SEG}, s{S_SEG}, 4
    v_xor_b32 v{V_XA}, 32768, v{V_XA}
    s_add_u32 s{S_I}, s{S_I}, 1
    s_cmp_lt_u32 s{S_I}, 16
    s_cbranch_scc1 {L}_loop
    s_waitcnt vmcnt(0)
    s_barrier""")
    signal(A, L, "b", CNT_D, f"s{S_PREV}")
    A(f"""    s_mov_b32 s{S_SEG}, s{S_GRP}
    s_mov_b32 s{S_I}, 0
{L}_uloop:
    s_mul_i32 s26, s{S_SEG}, {MEM_SEG}
    s_add_u32 s26, s26, {WS_MEMX}
{L}_upoll:""")
    for k in range(7):
        A(f"    buffer_load_dwordx4 {v(V_F+4*k,4)}, v{V_L16}, s[4:7], s26 offen offset:{1024*k if k < 4 else 0} sc1" if k < 4 else
          f"    buffer_load_dwordx4 {v(V_F+4*k,4)}, v{V_L16}, s[4:7], s27 offen offset:{1024*(k-4)} sc1")
        if k == 3: A("    s_add_u32 s27, s26, 4096")
    A("    s_waitcnt vmcnt(0)")
    T = V_T
    A(f"    v_max3_u32 v{T}, v{V_F}, v{V_F+1}, v{V_F+2}")
    for r in range(3, 27, 2):
        A(f"    v_max3_u32 v{T}, v{T}, v{V_F+r}, v{V_F+r+1}")
    A(f"    v_max_u32 v{T}, v{T}, v{V_F+27}")
    A(f"""    v_cmp_eq_u32 vcc, -1, v{T}
    s_cbranch_vccnz {L}_uretry""")
    OUTLINE.append(f"""{L}_uretry:
    s_cmp_eq_u32 s{S_TO}, 0
    s_cbranch_scc1 {L}_ugo
    s_sub_u32 s{S_TO}, s{S_TO}, 1
    s_sleep 4
    s_branch {L}_upoll""")
    A(f"{L}_ugo:")
    for t in range(7):
        for r in range(4): A(f"    v_mov_b32 v{V_ACC+4*t+r}, 0")
    for r in range(4): A(f"    v_mov_b32 v{V_ACC+28+r}, 0")
    for k in range(7):
        for t in range(7):
            A(f"    v_smfmac_f32_16x16x64_bf16 {v(V_ACC+4*t,4)}, {v(V_F+4*k,4)}, {W8(t*7+k)}, v{V_IDX}")
    A(f"""    s_lshl_b32 s26, s{S_SEG}, 4
    s_add_u32 s26, s26, s{S_H}
    s_mul_i32 s26, s26, {UX_SH}
    s_mul_i32 s27, s{S_WAVE}, {7*256}
    s_add_u32 s26, s26, s27
    s_add_u32 s26, s26, {WS_UX}
    s_nop 7""")
    for p in range(4):
        xa = V_ACC + 8*p; xb = xa + 4
        if p == 3:
            for r in range(4): A(f"    v_mov_b32 v{xb+r}, v{xa+r}")
        for r in range(4): A(f"    v_permlane32_swap_b32 v{xa+r}, v{xb+r}")
        for r in range(4): A(f"    v_add_f32 v{xa+r}, v{xa+r}, v{xb+r}")
        A(f"""    v_cvt_pk_bf16_f32 v{xa}, v{xa}, v{xa+1}
    v_cvt_pk_bf16_f32 v{xa+1}, v{xa+2}, v{xa+3}
    buffer_store_dwordx2 {v(xa,2)}, v{V_UO if p < 3 else V_UO6}, s[4:7], s26 offen offset:{512*p} sc1""")
    A(f"""    s_waitcnt vmcnt(0)
    s_barrier""")
    signal(A, L, "c", CNT_U, f"s{S_SEG}")
    A(f"""    s_add_u32 s{S_SEG}, s{S_SEG}, 4
    s_add_u32 s{S_I}, s{S_I}, 1
    s_cmp_lt_u32 s{S_I}, 16
    s_cbranch_scc1 {L}_uloop
    s_endpgm""")
    flush_outline(A)

def ts_role(A, prof=False):
    L = "ts"
    L_X = 0; L_MEM = 65536; L_PART = 73728
    V_XB=4; V_X01=5; V_X2=6; V_X3=7
    V_ACC=8
    V_X=64
    V_M01=80; V_M2=81; V_M3=82; V_POLL=83; V_STW=84; V_PW=85; V_PR=86; V_DQ=87; V_PXM=88; V_T=90
    def ACC(t, tt): return V_ACC + (t*2+tt)*4
    A(f"{L}_start:")
    head_group(A)
    A(f"""    v_lshrrev_b32 v8, 4, v0               ; g'
    v_and_b32 v9, 15, v0                  ; n / i'
    v_lshlrev_b32 v10, 9, v8
    v_lshlrev_b32 v11, 4, v9
    v_add_u32 v{V_XB}, v10, v11           ; B operand : g'*512 + n*16
    v_bfe_u32 v10, v9, 3, 1
    v_lshlrev_b32 v10, 4, v10
    v_bfe_u32 v11, v9, 1, 1
    v_lshlrev_b32 v11, 3, v11
    v_bfe_u32 v12, v9, 2, 1
    v_lshlrev_b32 v12, 2, v12
    v_and_b32 v13, 1, v9
    v_add3_u32 v10, v10, v11, v12
    v_add_u32 v10, v10, v13
    v_lshlrev_b32 v10, 4, v10             ; tok*16
    s_mul_i32 s24, s{S_WAVE}, {14*512}
    v_add_u32 v10, s24, v10
    v_lshlrev_b32 v11, 10, v8             ; 2g'*512
    v_add_u32 v{V_X01}, v10, v11
    v_lshlrev_b32 v11, 9, v8
    v_add3_u32 v{V_X2}, v10, v11, 0
    v_add_u32 v{V_X2}, {8*512}, v{V_X2}
    v_lshrrev_b32 v11, 1, v8
    v_lshlrev_b32 v11, 9, v11
    v_and_b32 v12, 1, v8
    v_lshlrev_b32 v12, 3, v12
    v_add3_u32 v{V_X3}, v10, v11, v12
    v_add_u32 v{V_X3}, {12*512}, v{V_X3}
    v_and_b32 v10, 7, v9
    v_lshlrev_b32 v10, 4, v10
    s_mul_i32 s24, s{S_WAVE}, {7*256}
    s_add_u32 s24, s24, {L_MEM}
    v_add_u32 v10, s24, v10
    v_lshlrev_b32 v11, 8, v8
    v_add_u32 v{V_M01}, v10, v11
    v_lshrrev_b32 v11, 1, v8
    v_lshlrev_b32 v11, 8, v11
    v_add3_u32 v{V_M2}, v10, v11, v12
    v_add_u32 v{V_M2}, 1024, v{V_M2}
    v_lshlrev_b32 v11, 2, v8
    v_add_u32 v{V_M3}, v10, v11
    v_add_u32 v{V_M3}, 1536, v{V_M3}
    s_lshl_b32 s24, s{S_WAVE}, 1
    s_min_u32 s24, s24, 5
    s_lshl_b32 s24, s24, 10
    v_add_u32 v{V_POLL}, s24, v{V_L16}
    v_add_u32 v{V_STW}, {L_MEM}, v{V_POLL}
    s_mul_i32 s24, s{S_WAVE}, 6144
    s_add_u32 s24, s24, {L_PART}
    v_add_u32 v{V_PW}, s24, v{V_L16}
    s_and_b32 s24, s{S_WAVE}, 1
    s_mul_i32 s25, s24, 3072
    s_add_u32 s25, s25, {L_PART}
    v_add_u32 v{V_PR}, s25, v{V_L16}
    s_lshl_b32 s25, s24, 4
    v_add_u32 v10, s25, v9
    v_lshrrev_b32 v11, 1, v8
    v_lshlrev_b32 v11, 4, v11
    v_sub_u32 v10, v10, v11
    v_and_b32 v11, 1, v8
    v_lshlrev_b32 v11, 2, v11
    v_sub_u32 v{V_DQ}, v10, v11
    v_add_u32 v10, s25, v9
    v_lshlrev_b32 v10, 4, v10
    v_lshlrev_b32 v11, 3, v8
    v_add_u32 v10, v10, v11
    v_mov_b32 v11, 0x7fff0000
    v_cmp_gt_u32 vcc, 2, v8
    s_nop 1
    v_cndmask_b32 v{V_PXM}, v11, v10, vcc
    s_lshl_b32 s24, s{S_H}, 2
    s_add_u32 s24, s24, s{S_WAVE}
    s_mul_i32 s24, s24, {49*2048}
    s_add_u32 s24, s24, {WS_AF}""")
    for t in range(7):
        for k in range(7):
            A(f"    buffer_load_dwordx4 {W4(t*7+k,0)}, v{V_L16}, s[4:7], s24 offen")
            A(f"    buffer_load_dwordx4 {W4(t*7+k,1)}, v{V_L16}, s[4:7], s24 offen offset:1024")
            A("    s_add_u32 s24, s24, 2048")
    A(f"""    v_mov_b32 v90, 0
    v_mov_b32 v91, 0
    v_lshlrev_b32 v92, 3, v0
    v_add_u32 v92, {L_MEM+7168}, v92
    ds_write_b64 v92, v[90:91]
    s_mov_b32 s{S_SEG}, s{S_GRP}
    s_mul_i32 s{S_XG}, s{S_SEG}, {XF_SEG}
    s_add_u32 s{S_XG}, s{S_XG}, {WS_XF}
    s_mov_b32 s{S_XL}, 0""")
    A("\n".join(xf_dma(f"s{S_XG}")))
    A(f"""    s_mov_b32 s{S_I}, 0
    s_mov_b32 s{S_A0}, 0x3DB8AA3B
{L}_loop:
    s_waitcnt vmcnt(0) lgkmcnt(0)
    s_barrier
    s_cmp_eq_u32 s{S_I}, 0
    s_cbranch_scc1 {L}_first""")
    signal(A, L, "a", CNT_PX, f"s{S_PREV}")
    A(f"""{L}_first:
    s_cmp_eq_u32 s{S_I}, 15
    s_cbranch_scc1 {L}_nodma
    s_add_u32 s{S_XG}, s{S_XG}, {4*XF_SEG}
    s_xor_b32 s{S_XL}, s{S_XL}, 32768""")
    A("\n".join(xf_dma(f"s{S_XG}")))
    A(f"{L}_nodma:")
    def rd(kp, buf):
        return [f"    ds_read_b128 {v(V_X+8*buf,4)}, v{V_XB} offset:{2048*kp}", f"    ds_read_b128 {v(V_X+8*buf+4,4)}, v{V_XB} offset:{2048*kp+256}"]
    A("\n".join(rd(0, 0)))
    for kp in range(14):
        b = kp & 1
        A("    s_waitcnt lgkmcnt(0)")
        if kp < 13: A("\n".join(rd(kp+1, 1-b)))
        for t in range(7):
            for tt in range(2):
                c = "0" if kp == 0 else v(ACC(t,tt),4)
                A(f"    v_mfma_f32_16x16x32_bf16 {v(ACC(t,tt),4)}, {W4(t*7+(kp>>1), kp&1)}, {v(V_X+8*b+4*tt,4)}, {c}")
    A("    s_nop 7")
    for tt in range(2):
        for p in range(3):
            x, y = ACC(2*p,tt), ACC(2*p+1,tt)
            A(f"""    v_cvt_pk_bf16_f32 v{x}, v{x}, v{x+1}
    v_cvt_pk_bf16_f32 v{x+1}, v{y}, v{y+1}
    v_cvt_pk_bf16_f32 v{x+2}, v{x+2}, v{x+3}
    v_cvt_pk_bf16_f32 v{x+3}, v{y+2}, v{y+3}""")
        z = ACC(6,tt)
        A(f"""    v_cvt_pk_bf16_f32 v{z}, v{z}, v{z+1}
    v_cvt_pk_bf16_f32 v{z+1}, v{z+2}, v{z+3}""")
    F = V_T
    A(f"""    s_mul_i32 s26, s{S_SEG}, {MEM_SEG}
    s_add_u32 s26, s26, {WS_MEMX}
{L}_poll:
    buffer_load_dwordx4 {v(F,4)}, v{V_POLL}, s[4:7], s26 offen sc1
    buffer_load_dwordx4 {v(F+4,4)}, v{V_POLL}, s[4:7], s26 offen offset:1024 sc1
    s_waitcnt vmcnt(0)
    ds_write_b128 v{V_STW}, {v(F,4)}
    ds_write_b128 v{V_STW}, {v(F+4,4)} offset:1024
    v_max3_u32 v{F+8}, v{F}, v{F+1}, v{F+2}
    v_max3_u32 v{F+9}, v{F+3}, v{F+4}, v{F+5}
    v_max3_u32 v{F+8}, v{F+8}, v{F+6}, v{F+7}
    v_max_u32 v{F+8}, v{F+8}, v{F+9}
    v_cmp_eq_u32 vcc, -1, v{F+8}
    s_cbranch_vccnz {L}_retry
{L}_go:
    s_waitcnt lgkmcnt(0)
    s_barrier""")
    OUTLINE.append(f"""{L}_retry:
    s_cmp_eq_u32 s{S_TO}, 0
    s_cbranch_scc1 {L}_go
    s_sub_u32 s{S_TO}, s{S_TO}, 1
    s_sleep 4
    s_branch {L}_poll""")
    def SA(T3, tt): return ACC(2*T3+1, tt)
    K = V_X
    reads = []
    for T3 in range(3):
        for p in range(4):
            if T3 < 2:
                o = 32*T3
                if p == 0: r = [f"    ds_read_b128 BUF4, v{V_X01} offset:{o}"]
                elif p == 1: r = [f"    ds_read_b128 BUF4, v{V_X01} offset:{o+512}"]
                elif p == 2: r = [f"    ds_read_b128 BUF4, v{V_X2} offset:{o}"]
                else: r = [f"    ds_read_b64 BUF2, v{V_X3} offset:{o}"]
            else:
                if p == 0: r = [f"    ds_read2_b32 BUFa, v{V_M01} offset0:0 offset1:32", f"    ds_read2_b32 BUFb, v{V_M01} offset0:1 offset1:33"]
                elif p == 1: r = [f"    ds_read2_b32 BUFa, v{V_M01} offset0:2 offset1:34", f"    ds_read2_b32 BUFb, v{V_M01} offset0:3 offset1:35"]
                elif p == 2: r = [f"    ds_read2_b32 BUFa, v{V_M2} offset0:0 offset1:32", f"    ds_read2_b32 BUFb, v{V_M2} offset0:1 offset1:33"]
                else: r = [f"    ds_read2_b32 BUFa, v{V_M3} offset0:0 offset1:32"]
            reads.append((T3, p, r))
    for T3 in range(3):
        for (t3, p, r) in reads:
            if t3 != T3: continue
            b = K + 4*p
            for ln in r: A(ln.replace("BUF4", v(b,4)).replace("BUF2", v(b,2)).replace("BUFa", v(b,2)).replace("BUFb", v(b+2,2)))
        A("    s_waitcnt lgkmcnt(0)")
        for p in range(4):
            for tt in range(2):
                c = "0" if p == 0 else v(SA(T3,tt),4)
                if p < 3: A(f"    v_mfma_f32_16x16x32_bf16 {v(SA(T3,tt),4)}, {v(K+4*p,4)}, {v(ACC(2*p,tt),4)}, {c}")
                else: A(f"    v_mfma_f32_16x16x16_bf16 {v(SA(T3,tt),4)}, {v(K+12,2)}, {v(ACC(6,tt),2)}, {c}")
    A("    s_nop 7")
    for tt in range(2):
        for T3 in range(3):
            A(f"    ds_write_b128 v{V_PW}, {v(SA(T3,tt),4)} offset:{(tt*3+T3)*1024}")
    A(f"""    s_waitcnt lgkmcnt(0)
    s_barrier
    s_cmp_ge_u32 s{S_WAVE}, 2
    s_cbranch_scc1 {L}_nosm""")
    R = V_ACC
    for w in range(4):
        for T3 in range(3):
            A(f"    ds_read_b128 {v(R+12*w+4*T3,4)}, v{V_PR} offset:{w*6144 + T3*1024}")
    A("    s_waitcnt lgkmcnt(0)")
    for i in range(0, 12, 2):
        A(f"    v_pk_add_f32 {v(R+i,2)}, {v(R+i,2)}, {v(R+12+i,2)}")
        A(f"    v_pk_add_f32 {v(R+24+i,2)}, {v(R+24+i,2)}, {v(R+36+i,2)}")
    for i in range(0, 12, 2):
        A(f"    v_pk_add_f32 {v(R+i,2)}, {v(R+i,2)}, {v(R+24+i,2)}")
    NI = R+12
    A(f"    v_mov_b32 v{NI}, 0xff800000")
    for T in range(2):
        for r in range(4):
            k = 8*(r>>1) + 2*T + (r&1)
            A(f"""    v_cmp_le_i32 vcc, {k}, v{V_DQ}
    s_nop 1
    v_cndmask_b32 v{R+4*T+r}, v{NI}, v{R+4*T+r}, vcc""")
    A("    v_cmp_gt_u32 vcc, 32, v0\n    s_nop 1")
    for r in range(4): A(f"    v_cndmask_b32 v{R+8+r}, v{NI}, v{R+8+r}, vcc")
    MX = R+13; TT = R+14
    A(f"""    v_max3_f32 v{MX}, v{R}, v{R+1}, v{R+2}
    v_max3_f32 v{TT}, v{R+3}, v{R+4}, v{R+5}
    v_max3_f32 v{MX}, v{MX}, v{R+6}, v{R+7}
    v_max3_f32 v{TT}, v{TT}, v{R+8}, v{R+9}
    v_max3_f32 v{MX}, v{MX}, v{R+10}, v{R+11}
    v_max_f32 v{MX}, v{MX}, v{TT}""")
    def cross(op, r, t):
        A(f"""    v_mov_b32 v{t}, v{r}
    v_permlane16_swap_b32 v{r}, v{t}
    {op} v{r}, v{r}, v{t}
    v_mov_b32 v{t}, v{r}
    v_permlane32_swap_b32 v{r}, v{t}
    {op} v{r}, v{r}, v{t}""")
    cross("v_max_f32", MX, TT)
    A(f"    v_mul_f32 v{MX}, s{S_A0}, v{MX}")
    for i in range(12): A(f"    v_fma_f32 v{R+i}, v{R+i}, s{S_A0}, -v{MX}")
    for i in range(12): A(f"    v_exp_f32 v{R+i}, v{R+i}")
    A("    s_nop 0")
    A(f"    v_add_f32 v{MX}, v{R}, v{R+1}")
    for i in range(2, 12): A(f"    v_add_f32 v{MX}, v{MX}, v{R+i}")
    cross("v_add_f32", MX, TT)
    A(f"    v_rcp_f32 v{MX}, v{MX}\n    s_nop 0")
    for i in range(12): A(f"    v_mul_f32 v{R+i}, v{R+i}, v{MX}")
    O = R+16
    for i in range(6): A(f"    v_cvt_pk_bf16_f32 v{O+i}, v{R+2*i}, v{R+2*i+1}")
    A(f"""    s_lshl_b32 s24, s{S_SEG}, 4
    s_add_u32 s24, s24, s{S_H}
    s_lshl_b32 s25, s24, 11
    s_lshl_b32 s26, s{S_WAVE}, 10
    s_add_u32 s25, s25, s26
    s_add_u32 s25, s25, {WS_PXX}
    buffer_store_dwordx4 {v(O,4)}, v{V_L16}, s[4:7], s25 offen sc1
    s_lshl_b32 s25, s24, 9
    s_add_u32 s25, s25, {WS_PXM}
    buffer_store_dwordx2 {v(O+4,2)}, v{V_PXM}, s[4:7], s25 offen sc1
{L}_nosm:
    s_mov_b32 s{S_PREV}, s{S_SEG}
    s_add_u32 s{S_SEG}, s{S_SEG}, 4""")
    for r in (V_XB, V_X01, V_X2, V_X3): A(f"    v_xor_b32 v{r}, 32768, v{r}")
    A(f"""    s_add_u32 s{S_I}, s{S_I}, 1
    s_cmp_lt_u32 s{S_I}, 16
    s_cbranch_scc1 {L}_loop
    s_waitcnt vmcnt(0)
    s_barrier""")
    signal(A, L, "b", CNT_PX, f"s{S_PREV}")
    A("    s_endpgm")
    flush_outline(A)

def to_role(A, prof=False):
    L = "to"
    V_D=8; V_U=72; V_PX=88; V_PM=152; V_ACC=168; V_T=172
    V_UO=4; V_PMO=5; V_OO=6
    S_J=44; S_CT=50; S_TT=51
    A(f"""{L}_start:
    s_cmp_ge_u32 s{S_IDX}, 84
    s_cbranch_scc1 {L}_end
    s_mul_i32 s{S_GRP}, s{S_IDX}, 4682      ; /14
    s_lshr_b32 s{S_GRP}, s{S_GRP}, 16
    s_mul_i32 s24, s{S_GRP}, 14
    s_sub_u32 s{S_J}, s{S_IDX}, s24
    s_and_b32 s{S_CT}, s{S_WAVE}, 1
    s_lshr_b32 s{S_TT}, s{S_WAVE}, 1
    v_lshlrev_b32 v{V_L16}, 4, v0
    v_lshrrev_b32 v8, 4, v0               ; g
    v_and_b32 v9, 15, v0                  ; n
    ; u : UX[s][4q+g][T][n] -> g*7168 + T*256 + n*16
    v_mul_u32_u24 v10, {UX_SH}, v8
    v_lshlrev_b32 v11, 4, v9
    s_lshl_b32 s24, s{S_J}, 1
    s_add_u32 s24, s24, s{S_CT}
    s_lshl_b32 s24, s24, 8
    v_add3_u32 v{V_UO}, v10, v11, s24
    v_lshlrev_b32 v10, 9, v8
    s_lshl_b32 s24, s{S_TT}, 8
    v_add3_u32 v{V_PMO}, v10, v11, s24
    s_lshl_b32 s24, s{S_TT}, 4
    v_add_u32 v10, s24, v9
    v_mul_u32_u24 v10, 896, v10
    v_and_b32 v11, 1, v8
    v_lshlrev_b32 v11, 4, v11
    v_lshrrev_b32 v12, 1, v8
    v_lshlrev_b32 v12, 3, v12
    v_add3_u32 v10, v10, v11, v12
    s_lshl_b32 s24, s{S_J}, 6
    s_lshl_b32 s25, s{S_CT}, 5
    s_add_u32 s24, s24, s25
    v_add_u32 v{V_OO}, s24, v10
    s_mov_b32 s{S_SEG}, s{S_GRP}
{L}_loop:""")
    wait_counter(A, L, "d", CNT_D, f"s{S_SEG}", V_T)
    A(f"""    s_mul_i32 s26, s{S_SEG}, {NJ*DF_SJ}
    s_lshl_b32 s27, s{S_J}, 15
    s_add_u32 s26, s26, s27
    s_lshl_b32 s27, s{S_CT}, 10
    s_add_u32 s26, s26, s27
    s_add_u32 s26, s26, {WS_DF}""")
    for h in range(16):
        if h % 2 == 0 and h: A("    s_add_u32 s26, s26, 4096")
        A(f"    buffer_load_dwordx4 {v(V_D+4*h,4)}, v{V_L16}, s[4:7], s26 offen offset:{(h&1)*2048} sc1")
    wait_counter(A, L, "p", CNT_PX, f"s{S_SEG}", V_T)
    A(f"""    s_lshl_b32 s26, s{S_SEG}, 15
    s_lshl_b32 s27, s{S_TT}, 10
    s_add_u32 s26, s26, s27
    s_add_u32 s26, s26, {WS_PXX}""")
    for h in range(16):
        if h % 2 == 0 and h: A("    s_add_u32 s26, s26, 4096")
        A(f"    buffer_load_dwordx4 {v(V_PX+4*h,4)}, v{V_L16}, s[4:7], s26 offen offset:{(h&1)*2048} sc1")
    A(f"""    s_lshl_b32 s26, s{S_SEG}, 13
    s_add_u32 s26, s26, {WS_PXM}""")
    for q in range(4):
        if q == 2: A("    s_add_u32 s26, s26, 4096")
        A(f"    buffer_load_dwordx4 {v(V_PM+4*q,4)}, v{V_PMO}, s[4:7], s26 offen offset:{(q&1)*2048} sc1")
    wait_counter(A, L, "u", CNT_U, f"s{S_SEG}", V_T)
    A(f"""    s_mul_i32 s26, s{S_SEG}, {16*UX_SH}
    s_add_u32 s26, s26, {WS_UX}""")
    for q in range(4):
        A(f"    buffer_load_dwordx4 {v(V_U+4*q,4)}, v{V_UO}, s[4:7], s26 offen sc1")
        if q < 3: A(f"    s_add_u32 s26, s26, {4*UX_SH}")
    A("    s_waitcnt vmcnt(4)")
    for h in range(16):
        c = "0" if h == 0 else v(V_ACC,4)
        A(f"    v_mfma_f32_16x16x32_bf16 {v(V_ACC,4)}, {v(V_D+4*h,4)}, {v(V_PX+4*h,4)}, {c}")
    A("    s_waitcnt vmcnt(0)")
    for q in range(4):
        A(f"    v_mfma_f32_16x16x32_bf16 {v(V_ACC,4)}, {v(V_U+4*q,4)}, {v(V_PM+4*q,4)}, {v(V_ACC,4)}")
    A(f"""    s_mul_i32 s26, s{S_SEG}, {32*896}
    v_cvt_pk_bf16_f32 v{V_T}, v{V_ACC}, v{V_ACC+1}
    v_cvt_pk_bf16_f32 v{V_T+1}, v{V_ACC+2}, v{V_ACC+3}
    v_permlane32_swap_b32 v{V_T}, v{V_T+1}
    buffer_store_dwordx2 {v(V_T,2)}, v{V_OO}, s[20:23], s26 offen
    s_add_u32 s{S_SEG}, s{S_SEG}, 6
    s_cmp_lt_u32 s{S_SEG}, 64
    s_cbranch_scc1 {L}_loop
{L}_end:
    s_endpgm""")
```

```python
from asmlib import *
from layout import *
from k2_common import *

L_D = 0
L_W = 65536
L_MEM = 98304
L_RED = 106496
V_IDX=1; V_POLL=2; V_STW=3; V_FR=4; V_LW=5; V_DR=6; V_P0=7; V_P1=8
V_RW=10; V_RR=11; V_MST=12; V_L16=13; V_CNT=14; V_TMP=15
V_F=16
V_WB=24
V_ACC=40
V_UB=72
V_PV=88
V_D=V_ACC
V_P=16
V_CHK=28
S_MEM=44; S_PM=45; S_DN=46; S_DL=47; S_MEMN=48; S_MEMX=49; S_CNT=51; S_CNTV=53;

def Wreg(ups, kap, half=None):
    sig = ups*7 + kap
    if sig < 32: base, f = 8*sig, a
    elif sig < 52: base, f = 96 + 8*(sig-32), v
    else: return None
    if half is None: return f(base, 8)
    return f(base + 4*half, 4)
def ACC(u): return v(V_ACC+4*u, 4)

def d_dma():
    l = [f"    s_mov_b32 m0, s{S_DL}"]
    for i in range(4):
        l.append(f"    buffer_load_dwordx4 v{V_L16}, s[4:7], s{S_DN} offen offset:{1024*i} sc1 lds")
    l.append(f"    s_add_u32 s24, s{S_DL}, 4096")
    l.append(f"    s_mov_b32 m0, s24")
    l.append(f"    s_add_u32 s25, s{S_DN}, 4096")
    for i in range(4):
        l.append(f"    buffer_load_dwordx4 v{V_L16}, s[4:7], s25 offen offset:{1024*i} sc1 lds")
    return l

def wait_cnt_d(A, L, tag):
    A(f"""{L}_cd{tag}:
    s_waitcnt vmcnt(0)
    v_readfirstlane_b32 s24, v{V_CNT}
    s_nop 0
    s_cmp_ge_u32 s24, 16
    s_cbranch_scc1 {L}_cd{tag}_go
    s_cmp_eq_u32 s{S_TO}, 0
    s_cbranch_scc1 {L}_cd{tag}_go
    s_sub_u32 s{S_TO}, s{S_TO}, 1
    v_mov_b32 v{V_TMP}, s{S_CNT}
    buffer_load_dword v{V_CNT}, v{V_TMP}, s[4:7], 0 offen sc1
    s_branch {L}_cd{tag}
{L}_cd{tag}_go:""")

def ugemm(A, L, side=()):
    side = list(side)
    F0 = v(V_F,4); F1 = v(V_F+4,4)
    def sm(ups, kap, fb, wb=None):
        w = Wreg(ups, kap) if wb is None else v(wb, 8)
        A(f"    v_smfmac_f32_16x16x64_bf16 {ACC(ups)}, {v(V_F+4*fb,4)}, {w}, v{V_IDX}")
    A(f"    ds_read_b128 {F0}, v{V_FR}")
    for kap in range(7):
        fb = kap & 1
        A("    s_waitcnt lgkmcnt(0)")
        if kap + 1 <= 6:
            A(f"    ds_read_b128 {v(V_F+4*(1-fb),4)}, v{V_FR} offset:{(kap+1)*1024}")
        pre = []
        if 3 <= kap+1 <= 6:
            wb = V_WB + 8*((kap+1)&1)
            o = (kap+1-3)*2048
            pre = [f"    ds_read_b128 {v(wb,4)}, v{V_LW} offset:{o}", f"    ds_read_b128 {v(wb+4,4)}, v{V_LW} offset:{o+1024}"]
        for ups in range(8):
            if ups == 7 and kap >= 3: sm(ups, kap, fb, V_WB + 8*(kap&1))
            else: sm(ups, kap, fb)
            if ups == 0 and pre:
                for ln in pre: A(ln)
            if ups in (2, 6) and side:
                for ln in side.pop(0): A(ln)
    for grp in side:
        for ln in grp: A(ln)
    for eta in range(4):
        for ct in range(2):
            src = V_ACC + 4*(eta*2+ct)
            al, ga = eta >> 1, eta & 1
            A(f"    v_cvt_pk_bf16_f32 v{V_UB+8*ct+4*al+ga}, v{src}, v{src+1}")
            A(f"    v_cvt_pk_bf16_f32 v{V_UB+8*ct+4*al+2+ga}, v{src+2}, v{src+3}")

def poll_mem(A, L, tag, PR=None):
    F = V_F
    A(f"""{L}_mpoll{tag}:
    buffer_load_dwordx4 {v(F,4)}, v{V_POLL}, s[4:7], s{S_MEM} offen sc1
    buffer_load_dwordx4 {v(F+4,4)}, v{V_POLL}, s[4:7], s{S_MEM} offen offset:1024 sc1
    s_waitcnt vmcnt(0)
    ds_write_b128 v{V_STW}, {v(F,4)}
    ds_write_b128 v{V_STW}, {v(F+4,4)} offset:1024
    v_max3_u32 v{V_CHK}, v{F}, v{F+1}, v{F+2}
    v_max3_u32 v{V_CHK+1}, v{F+3}, v{F+4}, v{F+5}
    v_max3_u32 v{V_CHK}, v{V_CHK}, v{F+6}, v{F+7}
    v_max_u32 v{V_CHK}, v{V_CHK}, v{V_CHK+1}
    v_cmp_eq_u32 vcc, -1, v{V_CHK}""")
    poll_tail(A, f"{L}_mpoll{tag}", f"{L}_mgo{tag}")
    if PR: PR.stamp(A, 0)
    A("""    s_waitcnt lgkmcnt(0)
    s_barrier""")
    if PR: PR.stamp(A, 1)

def value_role(A, mode, prof=False):
    L = f"va{mode}"
    SC = " sc1" if mode else ""
    A(f"{L}_start:")
    A(f"""
    v_lshrrev_b32 v16, 4, v0              ; g
    v_and_b32 v17, 15, v0                 ; n
    v_bfe_u32 v18, v0, 3, 1               ; bit3
    v_mul_u32_u24 v{V_IDX}, 0xaaaa, v18
    v_add_u32 v{V_IDX}, 0x4444, v{V_IDX}
    v_lshlrev_b32 v{V_L16}, 4, v0
    s_lshl_b32 s24, s{S_WAVE}, 1
    s_min_u32 s24, s24, 5
    s_lshl_b32 s25, s24, 10
    v_add_u32 v{V_POLL}, s25, v{V_L16}
    v_add_u32 v{V_STW}, {L_MEM}, v{V_POLL}
    v_add_u32 v{V_FR}, {L_MEM}, v{V_L16}
    s_lshl_b32 s25, s{S_WAVE}, 13
    v_add_u32 v{V_DR}, s25, v{V_L16}
    v_add_u32 v{V_LW}, {L_W}, v{V_DR}
    s_lshl_b32 s24, s{S_IDX}, 4
    s_lshl_b32 s25, s{S_WAVE}, 2
    s_add_u32 s24, s24, s25
    s_mul_i32 s24, s24, {2*7*2048}
    s_add_u32 s24, s24, {WS_CF}
""")
    for ups in range(8):
        for kap in range(7):
            w0 = Wreg(ups, kap, 0)
            if w0 is None:
                if kap == 3:
                    A(f"""    s_lshl_b32 s25, s{S_WAVE}, 13
    s_add_u32 s25, s25, {L_W}
    s_mov_b32 m0, s25""")
                if kap == 5:
                    A(f"""    s_add_u32 s25, s25, 4096
    s_mov_b32 m0, s25""")
                o = ((kap-3)&1)*2048
                A(f"    s_sub_u32 s26, s24, {o}")
                A(f"    buffer_load_dwordx4 v{V_L16}, s[4:7], s26 offen offset:{o} lds")
                A(f"    buffer_load_dwordx4 v{V_L16}, s[4:7], s26 offen offset:{o+1024} lds")
            else:
                A(f"    buffer_load_dwordx4 {w0}, v{V_L16}, s[4:7], s24 offen")
                A(f"    buffer_load_dwordx4 {Wreg(ups,kap,1)}, v{V_L16}, s[4:7], s24 offen offset:1024")
            A(f"    s_add_u32 s24, s24, 2048")
    A(f"""
    v_and_b32 v19, 7, v0                  ; m
    v_lshrrev_b32 v20, 1, v16             ; alpha
    v_and_b32 v21, 1, v16                 ; a0
    s_mul_i32 s25, s{S_WAVE}, {4*640}
    v_lshlrev_b32 v22, 1, v20
    v_add_u32 v22, v22, v18               ; 2*alpha+gamma
    v_mul_u32_u24 v22, 640, v22
    v_lshlrev_b32 v23, 4, v19
    v_add3_u32 v{V_P0}, v22, v23, s25     ; head*640 + m*16
    v_mul_u32_u24 v22, 640, v20
    v_lshlrev_b32 v23, 1, v21
    v_add_u32 v23, v23, v18               ; 2*a0+hs
    v_lshlrev_b32 v23, 4, v23
    v_add3_u32 v22, v22, v23, s25
    v_lshlrev_b32 v23, 6, v19
    v_add_u32 v23, 128, v23
    v_add_u32 v{V_P1}, v22, v23
    v_lshlrev_b32 v22, 2, v21
    v_add_u32 v22, v22, v20
    v_lshlrev_b32 v22, 5, v22
    v_add_u32 v22, v22, v17
    s_lshl_b32 s25, s{S_WAVE}, 8
    v_add_u32 v22, s25, v22
    v_lshlrev_b32 v22, 2, v22
    v_add_u32 v{V_RW}, {L_RED}, v22
    v_lshrrev_b32 v19, 3, v0              ; m
    v_and_b32 v20, 7, v0                  ; q
    v_lshlrev_b32 v22, 5, v19
    v_lshlrev_b32 v23, 1, v20
    s_and_b32 s25, s{S_WAVE}, 1
    s_lshl_b32 s26, s25, 4
    v_add3_u32 v22, v22, v23, s26
    v_lshlrev_b32 v22, 2, v22
    v_add_u32 v{V_RR}, {L_RED}, v22
    s_and_b32 s26, s{S_IDX}, 1
    s_lshl_b32 s26, s26, 1
    s_add_u32 s26, s26, s25
    s_lshl_b32 s26, s26, 8
    s_lshr_b32 s27, s{S_IDX}, 1
    s_lshl_b32 s27, s27, 10
    s_add_u32 s26, s26, s27
    v_lshrrev_b32 v22, 2, v20
    v_lshlrev_b32 v22, 3, v22
    v_add_u32 v22, v22, v19
    v_lshlrev_b32 v22, 4, v22
    v_and_b32 v23, 3, v20
    v_lshlrev_b32 v23, 2, v23
    v_add3_u32 v{V_MST}, v22, v23, s26
    ; ---- scalars ----
    s_mov_b32 s{S_STEP}, 0
    s_mov_b32 s{S_MEM}, {WS_MEMF}
    s_mov_b32 s{S_MEMN}, {WS_MEMF + MEM_SEG}
    s_mov_b32 s{S_PM}, {WS_PM}
    s_lshl_b32 s25, s{S_WAVE}, 13
    s_mov_b32 s{S_DL}, s25
    s_lshl_b32 s24, s{S_IDX}, 15
    s_add_u32 s24, s24, s25
    s_add_u32 s{S_DN}, s24, {WS_DF}
    s_mov_b32 s{S_CNT}, {CNT_D}
    v_mov_b32 v{V_TMP}, s{S_CNT}
    buffer_load_dword v{V_CNT}, v{V_TMP}, s[4:7], 0 offen sc1
""")
    wait_cnt_d(A, L, "a")
    A("\n".join(d_dma()))
    A(f"""    s_add_u32 s{S_DN}, s{S_DN}, {NJ*DF_SJ}
    s_xor_b32 s{S_DL}, s{S_DL}, 32768
    s_add_u32 s{S_CNT}, s{S_CNT}, 128
    v_mov_b32 v{V_TMP}, s{S_CNT}
    buffer_load_dword v{V_CNT}, v{V_TMP}, s[4:7], 0 offen sc1
""")
    wait_cnt_d(A, L, "b")
    A(f"""    s_add_u32 s{S_CNT}, s{S_CNT}, 128
    s_mov_b32 s{S_CNTV}, 16
    s_waitcnt vmcnt(0) lgkmcnt(0)
    s_barrier""")
    gstamp(A, 1, 2, 36)
    PR = Prof(prof)
    if prof: A(f'    s_add_u32 s24, s{S_IDX}, 16')
    PR.init(A, 's24')
    A(f"{L}_loop:")
    for r in range(32): A(f"    v_mov_b32 v{V_ACC+r}, 0")
    for r in range(8): A(f"    v_mov_b32 v{V_PV+r}, 0")
    poll_mem(A, L, "", PR)
    A(f"""
    s_cmp_ge_u32 s{S_CNTV}, 16
    s_cbranch_scc0 {L}_cdslow
{L}_cdok:
    v_mov_b32 v{V_TMP}, s{S_CNT}""")
    OUTLINE.append(f"""{L}_cdslow:
    s_sub_u32 s24, s{S_CNT}, 128
    v_mov_b32 v{V_TMP}, s24
{L}_cdslow_p:
    buffer_load_dword v{V_CNT}, v{V_TMP}, s[4:7], 0 offen sc1
    s_waitcnt vmcnt(0)
    v_readfirstlane_b32 s24, v{V_CNT}
    s_nop 0
    s_cmp_ge_u32 s24, 16
    s_cbranch_scc1 {L}_cdok
    s_cmp_eq_u32 s{S_TO}, 0
    s_cbranch_scc1 {L}_cdok
    s_sub_u32 s{S_TO}, s{S_TO}, 1
    s_branch {L}_cdslow_p""")
    dd = d_dma()
    side = [[f"    buffer_load_dword v{V_CNT}, v{V_TMP}, s[4:7], 0 offen sc1"],
            dd[0:2], [dd[2]], [dd[3]], [dd[4]], dd[5:9], [dd[9]], [dd[10]], [dd[11]]]
    ugemm(A, L, side)
    for ct in range(2):
        for eta in range(4):
            A(f"    ds_read_b128 {v(V_D+16*ct+4*eta,4)}, v{V_DR} offset:{(eta*2+ct)*1024}")
    P = V_P
    PR.stamp(A, 2)
    A(f"""{L}_ppoll:
    buffer_load_dwordx4 {v(P,4)}, v{V_P0}, s[4:7], s{S_PM} offen sc1
    buffer_load_dwordx4 {v(P+4,4)}, v{V_P1}, s[4:7], s{S_PM} offen sc1
    buffer_load_dwordx4 {v(P+8,4)}, v{V_P1}, s[4:7], s{S_PM} offen offset:1280 sc1
    s_waitcnt vmcnt(0)
    v_max3_u32 v{V_CHK}, v{P}, v{P+4}, v{P+8}
    v_cmp_eq_u32 vcc, -1, v{V_CHK}""")
    poll_tail(A, f"{L}_ppoll", f"{L}_pgo")
    PR.stamp(A, 3)
    A("    s_waitcnt lgkmcnt(0)")
    def pv(ct, pa, b): A(f"    v_smfmac_f32_16x16x64_bf16 {v(V_PV+4*ct,4)}, {v(pa,4)}, {v(b,8)}, v{V_IDX}")
    pv(0, P, V_UB); pv(1, P, V_UB+8)
    A(f"""    v_max3_u32 v{V_CHK}, v{P+1}, v{P+2}, v{P+3}
    v_max3_u32 v{V_CHK+1}, v{P+5}, v{P+6}, v{P+7}""")
    pv(0, P+4, V_D);
    A(f"""    v_max3_u32 v{V_CHK+2}, v{P+9}, v{P+10}, v{P+11}
    v_max3_u32 v{V_CHK}, v{V_CHK}, v{V_CHK+1}, v{V_CHK+2}""")
    pv(1, P+4, V_D+16)
    A(f"    v_cmp_eq_u32 vcc, -1, v{V_CHK}")
    pv(0, P+8, V_D+8)
    A(f"    v_readfirstlane_b32 s{S_CNTV}, v{V_CNT}")
    pv(1, P+8, V_D+24)
    A(f"    s_cbranch_vccnz {L}_pfail")
    A(f"{L}_pok:")
    OUTLINE.append(f"""{L}_pfail:
    s_cmp_eq_u32 s{S_TO}, 0
    s_cbranch_scc1 {L}_pfail_go
    s_sub_u32 s{S_TO}, s{S_TO}, 1
    s_nop 7
""" + "\n".join(f"    v_mov_b32 v{V_PV+r}, 0" for r in range(8)) + f"""
    s_branch {L}_ppoll
{L}_pfail_go:
    s_nop 7
    s_branch {L}_pok""")
    for ct in range(2):
        b = V_PV + 4*ct
        A(f"""    v_permlane32_swap_b32 v{b}, v{b+1}
    v_permlane32_swap_b32 v{b+2}, v{b+3}""")
    for ct in range(2):
        b = V_PV + 4*ct
        A(f"""    v_add_f32 v{b}, v{b}, v{b+1}
    v_add_f32 v{b+2}, v{b+2}, v{b+3}""")
    R = V_WB
    A(f"""    ds_write2_b32 v{V_RW}, v{V_PV}, v{V_PV+4} offset0:0 offset1:16
    ds_write2_b32 v{V_RW}, v{V_PV+2}, v{V_PV+6} offset0:64 offset1:80
    s_waitcnt lgkmcnt(0)
    s_barrier""")
    PR.stamp(A, 4)
    A(f"""    s_cmp_ge_u32 s{S_WAVE}, 2
    s_cbranch_scc1 {L}_nofin
    ds_read2st64_b64 {v(R,4)}, v{V_RR} offset0:0 offset1:2
    ds_read2st64_b64 {v(R+4,4)}, v{V_RR} offset0:4 offset1:6
    s_waitcnt lgkmcnt(0)
    v_pk_add_f32 {v(R,2)}, {v(R,2)}, {v(R+2,2)}
    v_pk_add_f32 {v(R+4,2)}, {v(R+4,2)}, {v(R+6,2)}
    v_pk_add_f32 {v(R,2)}, {v(R,2)}, {v(R+4,2)}
    v_cvt_pk_bf16_f32 v{R}, v{R}, v{R+1}
    v_min_u32 v{R}, 0xfffffffe, v{R}
    buffer_store_dword v{R}, v{V_MST}, s[4:7], s{S_MEMN} offen{SC}
{L}_nofin:""")
    PR.stamp(A, 5)
    PR.stamp(A, 6)
    PR.flush(A, V_WB+4)
    A(f"""    s_add_u32 s{S_DN}, s{S_DN}, {NJ*DF_SJ}
    s_xor_b32 s{S_DL}, s{S_DL}, 32768
    v_xor_b32 v{V_DR}, 32768, v{V_DR}
    s_add_u32 s{S_CNT}, s{S_CNT}, 128
    s_add_u32 s{S_STEP}, s{S_STEP}, 1
    s_add_u32 s{S_MEM}, s{S_MEM}, {MEM_SEG}
    s_add_u32 s{S_MEMN}, s{S_MEMN}, {MEM_SEG}
    s_add_u32 s{S_PM}, s{S_PM}, {PM_SEG}
    s_cmp_lt_u32 s{S_STEP}, 63
    s_cbranch_scc1 {L}_loop""")
    gstamp(A, 1, 3, 36)
    A("    s_endpgm")
    flush_outline(A)
```

```python
import numpy as np
H=16; DM=448; DH=256; M=8; SEG=32; NSEG=64; S=2048
NJ=14
def _al(x, a=4096): return (x + a-1)//a*a
off = 0
def _take(n):
    global off
    o = off; off = _al(off + n); return o
XF_SEG = 56*32*16
XS_SEG = 4*2*2*2*1024
MEM_SEG = 7*1024
PM_SEG = 16*640
DF_SJ = 16*2*1024
UX_SH = 28*256
WS_XF   = _take(NSEG*XF_SEG)
WS_XS   = _take(NSEG*XS_SEG)
WS_AF   = _take(16*4*7*7*2048)
WS_CF   = _take(NJ*16*2*7*2048)
WS_MEMF = _take((NSEG+1)*MEM_SEG)
WS_MEMX = _take((NSEG+1)*MEM_SEG)
WS_PM   = _take(NSEG*PM_SEG)
WS_DF   = _take(NSEG*NJ*DF_SJ)
WS_UX   = _take(NSEG*16*UX_SH)
WS_PXX  = _take(NSEG*16*2048)
WS_PXM  = _take(NSEG*16*512)
WS_CNT  = _take(65536)
CNT_D   = WS_CNT
CNT_PX  = WS_CNT + 64*128
CNT_U   = WS_CNT + 128*128
WS_PROF = _take(1<<20)
WS_END  = off
WS_BYTES = 268435456
SENT = 0xFFFFFFFF

def cA(w, tau, i):
    if tau < 4:
        k = 16*(i>>2) + 8*((tau>>1)&1) + 4*((i>>1)&1) + 2*(tau&1) + (i&1)
        return 112*w + k
    if tau < 6:
        return 112*w + 64 + 8*(i>>2) + 4*((i>>1)&1) + 2*(tau&1) + (i&1)
    return 112*w + 96 + i
def piC(n): return 4*((n&7)>>1) + 2*(n>>3) + (n&1)
def tokperm(g, e): return 16*(g>>1) + 8*((e>>1)&1) + 2*(2*(g&1) + (e>>2)) + (e&1)
def xs_col(w, u, k):
    if u == 0: return 112*w + k
    j = k>>3; g = j>>1; eps = j&1; p = k&7
    if eps == 0: return 112*w + 64 + 8*g + p
    if p in (0,1): return 112*w + 96 + 4*g + p
    if p in (4,5): return 112*w + 96 + 4*g + 2 + (p-4)
    return None
KMAP = [[0,1,2,3,4,5,6],[2,3,0,1,4,5,6],[4,5,0,1,2,3,6],[5,6,0,1,2,3,4]]

lane = np.arange(64); g_ = lane>>4; n_ = lane&15
e8 = np.arange(8)

def build_AF(A):
    out = np.zeros((16,4,7,7,2,64,8), A.dtype)
    for w in range(4):
        for tau in range(7):
            cols = np.array([cA(w,tau,i) for i in range(16)])[n_]
            for kap in range(7):
                for half in range(2):
                    rows = 64*kap + 32*half + 8*g_[:,None] + e8[None,:]
                    out[:,w,tau,kap,half] = A[:, rows, cols[:,None]]
    return out
def build_CF(C):
    out = np.zeros((NJ,16,2,7,2,64,8), C.dtype)
    pi = np.array([piC(n) for n in range(16)])[n_]
    for j in range(NJ):
        for ct in range(2):
            cols = 32*j + 16*ct + pi
            for kap in range(7):
                for half in range(2):
                    rows = 64*kap + 32*half + 8*g_[:,None] + e8[None,:]
                    out[j,:,ct,kap,half] = C[:, rows, cols[:,None]]
    return out
def build_XF(x):
    return np.ascontiguousarray(x.reshape(64,32,56,8).transpose(0,2,1,3))
def build_XS(x):
    out = np.zeros((64,4,2,2,2,64,8), x.dtype)
    xs = x.reshape(64,32,448)
    for w in range(4):
        for u in range(2):
            for half in range(2):
                for l in range(64):
                    g = l>>4; n = l&15
                    for e in range(8):
                        c = xs_col(w,u,32*half + 8*g + e)
                        if c is None: continue
                        for T in range(2):
                            out[:,w,u,T,half,l,e] = xs[:,16*T+n,c]
    return out
def mem_to_frag(mem):
    out = np.zeros((7,64,8), mem.dtype)
    for kap in range(7):
        for l in range(64):
            gA = l>>4; hs = (l>>3)&1; m = l&7
            cols = 64*kap + 16*gA + 4*(e8>>1) + 2*hs + (e8&1)
            out[kap,l] = mem[m, cols]
    return out
def frag_to_mem(f):
    mem = np.zeros((8,448), f.dtype)
    for kap in range(7):
        for l in range(64):
            gA = l>>4; hs = (l>>3)&1; m = l&7
            cols = 64*kap + 16*gA + 4*(e8>>1) + 2*hs + (e8&1)
            mem[m, cols] = f[kap,l]
    return mem
def build_DF(D):
    out = np.zeros((64,NJ,16,2,64,8), D.dtype)
    pi = np.array([piC(n) for n in range(16)])[n_]
    tok = np.array([[tokperm(g,e) for e in range(8)] for g in range(4)])[g_]
    Ds = D.reshape(16,64,32,448)
    for j in range(NJ):
        for ct in range(2):
            cols = 32*j + 16*ct + pi
            blk = Ds[:,:,tok,cols[:,None]]
            out[:,j,:,ct] = blk.transpose(1,0,2,3)
    return out
if __name__ == "__main__":
    for k,vv in list(globals().items()):
        if k.startswith("WS_"): print(k, hex(vv), vv)

def build_UX(us):
    pi = np.array([piC(n) for n in range(16)])
    out = np.zeros((64,16,28,16,8), us[0].dtype)
    for s in range(64):
        for T in range(28):
            out[s,:,T] = us[s][:, :, 16*T + pi].transpose(0,2,1)
    return out
def build_PXX(Px):
    tok = np.array([[tokperm(g,e) for e in range(8)] for g in range(4)])[g_]
    out = np.zeros((64,16,2,64,8), Px[0].dtype)
    for s in range(64):
        for tt in range(2):
            out[s,:,tt] = Px[s][:, (16*tt + n_)[:,None], 8 + tok]
    return out
def build_PXM(Px):
    return np.stack([p[:,:,:8] for p in Px])
```

```python
import sys
from asmlib import *
from layout import *
from k2_common import *
import k2_score, k2_value, k2_helper, k2_side

NAME = "standalone__memory_aug_recurrent_mem_tr__prompt"
HEADER = """; Kernarg layout (80 bytes, pointers only): x, mem0, Wq, Wk, Wv, Wo, seg_len, d_out, d_debug, d_ws
"""
def kd(name, vgpr, accum, sgpr=102):
    return f""".amdhsa_kernel {name}
  .amdhsa_next_free_vgpr {vgpr}
  .amdhsa_next_free_sgpr {sgpr}
  .amdhsa_accum_offset {accum}
  .amdhsa_group_segment_fixed_size 0
  .amdhsa_kernarg_size 80
  .amdhsa_user_sgpr_count 2
  .amdhsa_user_sgpr_kernarg_segment_ptr 1
  .amdhsa_system_sgpr_workgroup_id_x 1
  .amdhsa_float_denorm_mode_32 3
.end_amdhsa_kernel
"""
def gen_main(A, prof, roles):
    name = "main_kernel"
    A(f".globl {name}\n.p2align 8\n.type {name},@function")
    k2_prologue(A, name)
    A(f"""    s_cmp_eq_u32 s{S_ROLE}, 0
    s_cbranch_scc0 {name}_n0
    s_cmp_eq_u32 s{S_MODE}, 0
    s_cbranch_scc1 sc0_start
    s_branch sc1_start
{name}_n0:
    s_cmp_eq_u32 s{S_ROLE}, 1
    s_cbranch_scc0 {name}_n1
    s_cmp_eq_u32 s{S_MODE}, 0
    s_cbranch_scc1 va0_start
    s_branch va1_start
{name}_n1:""")
    A(f"    s_cmp_eq_u32 s{S_ROLE}, 6\n    s_cbranch_scc1 hp_start")
    for r, lab in ((2, "dp_start"), (3, "ts_start"), (4, "to_start")):
        if r in roles:
            A(f"    s_cmp_eq_u32 s{S_ROLE}, {r}\n    s_cbranch_scc1 {lab}")
    A(f"{name}_end:\n    s_endpgm")
    k2_score.score_role(A, 0, prof); k2_value.value_role(A, 0, prof)
    k2_score.score_role(A, 1, prof); k2_value.value_role(A, 1, prof)
    k2_helper.helper_role(A, prof)
    for r in roles: roles[r](A, prof)

def build(prof=False, kernels=("main",), roles={}, verbose=False, extra=None):
    A = Asm()
    launches = []
    if "prep" in kernels: launches.append("; @launch kernel=prep_kernel grid=(256,1,1) block=(256,1,1) lds=65536")
    launches.append("; @launch kernel=main_kernel grid=(256,1,1) block=(256,1,1) lds=163840")
    body = Asm()
    if "prep" in kernels:
        import k1_prep
        k1_prep.prep_kernel(body)
    gen_main(body, prof, roles)
    fixed, log = fix_hazards(body.lines, verbose=verbose)
    txt = HEADER + "\n".join(launches) + "\n"
    txt += '.amdgcn_target "amdgcn-amd-amdhsa--gfx950"\n.text\n'
    txt += "\n".join(fixed) + "\n"
    txt += '.section .rodata,"a"\n.p2align 6\n'
    if "prep" in kernels: txt += kd("prep_kernel", 256, 256) .replace("XX","") + ".p2align 6\n"
    txt += kd("main_kernel", 512, 256)
    return txt, log

if __name__ == "__main__":
    prof = "--prof" in sys.argv
    import k2_common
    for a_ in sys.argv:
        if a_.startswith("--stamps="): k2_common.STAMPS = set(int(x) for x in a_[9:].split(","))
        if a_ == "--gprof": k2_common.GPROF = True
        if a_ == "--cyc": k2_common.TIMER = "s_memtime"
    kernels = ("prep", "main") if "--prep" in sys.argv else ("main",)
    roles = {}
    rs = "dp,ts,to"
    for a_ in sys.argv:
        if a_.startswith("--roles="): rs = a_[8:]
    if "dp" in rs: roles[2] = k2_side.dp_role
    if "ts" in rs: roles[3] = k2_side.ts_role
    if "to" in rs: roles[4] = k2_side.to_role
    txt, log = build(prof=prof, verbose="-v" in sys.argv, kernels=kernels, roles=roles)
    out = [a_ for a_ in sys.argv[1:] if not a_.startswith("-")]
    open(out[0] if out else "chain.s", "w").write(txt)
    print("lines", txt.count("\n"), "bytes", len(txt), "nop sites", len(log))
```

```python
from asmlib import *
from layout import *
from k2_common import gstamp
import k2_common as k2c

S_WS=4; S_WA=8; S_WB=12; S_X=16; S_M0=20
V_ACC=0x40
def ACC(rt, tau): return V_ACC + (rt*7 + tau)*4
V_A=176
V_B=208
V_B2=8
L_STRIDE = 896

def prep_kernel(A):
    n = "prep_kernel"
    A(f""".globl {n}
.p2align 8
.type {n},@function
{n}:
    s_cmp_ge_u32 s2, 256
    s_cbranch_scc1 {n}_end
    s_load_dwordx4 s[24:27], s[0:1], 0      ; x, mem0
    s_load_dwordx4 s[28:31], s[0:1], 16
    s_load_dwordx4 s[32:35], s[0:1], 32
    s_load_dwordx2 s[36:37], s[0:1], 72     ; ws
    v_lshrrev_b32 v1, 6, v0
    v_and_b32 v2, 63, v0                    ; lane
    s_nop 0
    v_readfirstlane_b32 s3, v1              ; wave
    s_waitcnt lgkmcnt(0)
    s_mov_b32 s4, s36
    s_mov_b32 s5, s37
    s_mov_b32 s6, 0x10000000
    s_mov_b32 s7, 0x00020000
""")
    gstamp(A, 0, 0)
    A(f"""    s_cmp_ge_u32 s2, 224
    s_cbranch_scc1 {n}_misc
    v_lshrrev_b32 v3, 4, v2                 ; g
    v_and_b32 v4, 15, v2                    ; n / i
    s_cmp_ge_u32 s2, 112
    s_cbranch_scc1 {n}_cjob
""")
    def row_addr(A, sjob):
        A(f"""    s_mul_i32 s40, {sjob}, 9363          ; /7 via 9363/65536
    s_lshr_b32 s40, s40, 16
    s_mul_i32 s41, s40, 7
    s_sub_u32 s41, {sjob}, s41
    v_lshrrev_b32 v5, 2, v4
    v_lshlrev_b32 v5, 3, v5
    v_and_b32 v6, 3, v4
    v_add_u32 v5, v5, v6
    s_lshl_b32 s42, s41, 6
    v_add_u32 v5, s42, v5
    v_lshlrev_b32 v5, 13, v5
    v_lshlrev_b32 v6, 4, v3
    s_lshl_b32 s42, s40, 9
    v_add3_u32 v5, v5, v6, s42""")
    RT_OFF = [0, 4*8192, 32*8192, 36*8192]
    def load_a(buf, srd, eps):
        l = []
        for rt in range(4):
            l.append(f"    buffer_load_dwordx4 {v(V_A+16*buf+4*rt,4)}, v5, s[{srd}:{srd+3}], s{44+rt} offen offset:{64*eps}")
        return l
    def zero_acc(A):
        for r in range(112): A(f"    v_mov_b32 v{V_ACC+r}, 0")
    def store_frags(A, vaddr, stride_tau_fn):
        for tau in range(7):
            for half in range(2):
                a0 = ACC(2*half, tau); a1 = ACC(2*half+1, tau)
                t = 8 + 4*((tau*2+half) & 3)
                A(f"""    v_cvt_pk_bf16_f32 v{t}, v{a0}, v{a0+1}
    v_cvt_pk_bf16_f32 v{t+1}, v{a0+2}, v{a0+3}
    v_cvt_pk_bf16_f32 v{t+2}, v{a1}, v{a1+1}
    v_cvt_pk_bf16_f32 v{t+3}, v{a1+2}, v{a1+3}""")
                A(stride_tau_fn(tau, half, t))
    A(f"""    s_mov_b32 s8, s28
    s_mov_b32 s9, s29
    s_mov_b32 s10, {448*8192}
    s_mov_b32 s11, 0x00020000
    s_mov_b32 s12, s30
    s_mov_b32 s13, s31
    s_mov_b32 s14, {448*8192}
    s_mov_b32 s15, 0x00020000""")
    row_addr(A, "s2")
    for rt in range(4): A(f"    s_mov_b32 s{44+rt}, {RT_OFF[rt]}")
    A(f"""    v_lshrrev_b32 v6, 2, v4               ; n>>2
    v_bfe_u32 v7, v4, 1, 1
    v_and_b32 v36, 1, v4
    v_lshlrev_b32 v37, 2, v7
    v_add_u32 v37, v37, v36               ; 4*((n>>1)&1) + (n&1)
    s_mul_i32 s42, s3, 112
    v_lshlrev_b32 v38, 4, v6
    v_add3_u32 v38, v38, v37, s42
    v_lshlrev_b32 v39, 3, v6
    v_add3_u32 v39, v39, v37, s42
    v_add_u32 v40, s42, v4                ; tau 6 (+96)
    v_lshlrev_b32 v6, 4, v3
    s_lshl_b32 s42, s40, 9
    v_add_u32 v6, s42, v6                 ; h*512 + 16g""")
    col = [(38,0),(38,2),(38,8),(38,10),(39,64),(39,66),(40,96)]
    for tau,(r,c) in enumerate(col):
        A(f"""    v_add_u32 v7, {c}, v{r}
    v_lshlrev_b32 v7, 13, v7
    v_add_u32 v{48+tau}, v7, v6""")
    zero_acc(A)
    BB = [V_B, V_B2]
    def load_b(buf, eps):
        return [f"    buffer_load_dwordx4 {v(BB[buf]+4*tau,4)}, v{48+tau}, s[12:15], 0 offen offset:{64*eps}" for tau in range(7)]
    A("\n".join(load_a(0, 8, 0) + load_b(0, 0)))
    for eps in range(8):
        b = eps & 1
        if eps < 7:
            A("\n".join(load_a(1-b, 8, eps+1) + load_b(1-b, eps+1)))
            A("    s_waitcnt vmcnt(11)")
        else:
            A("    s_waitcnt vmcnt(0)")
        for tau in range(7):
            for rt in range(4):
                A(f"    v_mfma_f32_16x16x32_bf16 {v(ACC(rt,tau),4)}, {v(V_A+16*b+4*rt,4)}, {v(BB[b]+4*tau,4)}, {v(ACC(rt,tau),4)}")
    A(f"""    s_lshl_b32 s42, s40, 2
    s_add_u32 s42, s42, s3
    s_mul_i32 s42, s42, 49
    s_add_u32 s42, s42, s41
    s_lshl_b32 s42, s42, 11
    s_add_u32 s42, s42, {WS_AF}
    v_lshlrev_b32 v5, 4, v2""")
    def st_a(tau, half, t):
        return f"""    s_add_u32 s43, s42, {tau*7*2048}
    buffer_store_dwordx4 {v(t,4)}, v5, s[4:7], s43 offen offset:{half*1024}"""
    gstamp(A, 0, 1)
    store_frags(A, 5, st_a)
    if k2c.GPROF: A("    s_waitcnt vmcnt(0)")
    gstamp(A, 0, 2)
    A("    s_endpgm")
    A(f"""{n}_cjob:
    s_mov_b32 s8, s32
    s_mov_b32 s9, s33
    s_mov_b32 s10, {448*8192}
    s_mov_b32 s11, 0x00020000
    s_mov_b32 s12, s34
    s_mov_b32 s13, s35
    s_mov_b32 s14, {16*256*896}
    s_mov_b32 s15, 0x00020000
    s_sub_u32 s39, s2, 112""")
    row_addr(A, "s39")
    for rt in range(4): A(f"    s_mov_b32 s{44+rt}, {RT_OFF[rt]}")
    A(f"""    v_lshlrev_b32 v6, 4, v2               ; lane*16
    s_mul_i32 s48, s40, {256*896}
    s_mul_i32 s49, s3, 7168
    s_add_u32 s48, s48, s49
    v_lshrrev_b32 v7, 2, v4
    v_lshlrev_b32 v36, 3, v3
    v_add_u32 v7, v7, v36
    v_mul_u32_u24 v7, {L_STRIDE}, v7
    v_and_b32 v36, 3, v4
    v_lshlrev_b32 v36, 3, v36
    s_mul_i32 s50, s3, 224
    v_add3_u32 v7, v7, v36, s50""")
    zero_acc(A)
    def dma_c(buf, eps):
        l = [f"    s_add_u32 s50, s49, {buf*28672}", "    s_mov_b32 m0, s50", f"    s_add_u32 s51, s48, {eps*28672}"]
        for i in range(4): l.append(f"    buffer_load_dwordx4 v6, s[12:15], s51 offen offset:{1024*i} lds")
        l += ["    s_add_u32 s50, s50, 4096", "    s_mov_b32 m0, s50", "    s_add_u32 s51, s51, 4096"]
        for i in range(3): l.append(f"    buffer_load_dwordx4 v6, s[12:15], s51 offen offset:{1024*i} lds")
        return l
    A("\n".join(load_a(0, 8, 0) + dma_c(0, 0)))
    for eps in range(8):
        b = eps & 1
        A("    s_waitcnt vmcnt(0)\n    s_barrier")
        if eps < 7:
            A("\n".join(load_a(1-b, 8, eps+1) + dma_c(1-b, eps+1)))
        base = b*28672
        def rd(tau, dst):
            return [f"    ds_read_b64_tr_b16 {v(dst,2)}, v7 offset:{base + 32*tau}",
                    f"    ds_read_b64_tr_b16 {v(dst+2,2)}, v7 offset:{base + 32*tau + 4*L_STRIDE}"]
        A("\n".join(rd(0, V_B)))
        for tau in range(7):
            cur = V_B + 4*(tau&1)
            if tau < 6:
                A("\n".join(rd(tau+1, V_B + 4*((tau+1)&1))))
                A("    s_waitcnt lgkmcnt(2)")
            else:
                A("    s_waitcnt lgkmcnt(0)")
            for rt in range(4):
                A(f"    v_mfma_f32_16x16x32_bf16 {v(ACC(rt,tau),4)}, {v(V_A+16*b+4*rt,4)}, {v(cur,4)}, {v(ACC(rt,tau),4)}")
    A(f"""    v_bfe_u32 v5, v4, 1, 1
    v_lshlrev_b32 v5, 3, v5
    v_lshrrev_b32 v6, 2, v4
    v_lshlrev_b32 v6, 1, v6
    v_and_b32 v7, 1, v4
    v_add3_u32 v5, v5, v6, v7             ; pinv(n)
    v_lshlrev_b32 v6, 4, v3
    v_add_u32 v5, v5, v6
    v_lshlrev_b32 v5, 4, v5
    s_mul_i32 s50, s3, 7""")
    def st_c(tau, half, t):
        return f"""    s_add_u32 s51, s50, {tau}
    s_lshr_b32 s52, s51, 1
    s_and_b32 s51, s51, 1
    s_lshl_b32 s52, s52, 4
    s_add_u32 s52, s52, s40
    s_lshl_b32 s52, s52, 1
    s_add_u32 s52, s52, s51
    s_mul_i32 s52, s52, 7
    s_add_u32 s52, s52, s41
    s_lshl_b32 s52, s52, 11
    s_add_u32 s52, s52, {WS_CF}
    buffer_store_dwordx4 {v(t,4)}, v5, s[4:7], s52 offen offset:{half*1024}"""
    store_frags(A, 5, st_c)
    if k2c.GPROF: A("    s_waitcnt vmcnt(0)")
    gstamp(A, 0, 2)
    A("    s_endpgm")
    A(f"""{n}_misc:
    s_mov_b32 s16, s24
    s_mov_b32 s17, s25
    s_mov_b32 s18, {S*DM*2}
    s_mov_b32 s19, 0x00020000
    s_mov_b32 s20, s26
    s_mov_b32 s21, s27
    s_mov_b32 s22, {M*DM*2}
    s_mov_b32 s23, 0x00020000
    s_sub_u32 s39, s2, 224
    s_lshl_b32 s40, s39, 8
    v_add_u32 v3, s40, v0                 ; t = 0..8191
""")
    for i in range(14):
        A(f"""    v_add_u32 v4, {8192*i}, v3
    v_and_b32 v5, 31, v4                  ; tok
    v_lshrrev_b32 v6, 5, v4               ; s*56+gam
    s_mov_b32 s41, 74899                  ; /56 via 74899/2^22
    v_mul_lo_u32 v7, v6, s41
    v_lshrrev_b32 v7, 22, v7              ; s
    v_mul_u32_u24 v8, 56, v7
    v_sub_u32 v8, v6, v8                  ; gam
    v_lshlrev_b32 v7, 5, v7
    v_add_u32 v7, v7, v5
    v_mul_u32_u24 v7, 896, v7
    v_lshlrev_b32 v8, 4, v8
    v_add_u32 v7, v7, v8
    buffer_load_dwordx4 {v(16+4*i,4)}, v7, s[16:19], 0 offen""")
    A(f"    v_lshlrev_b32 v4, 4, v3")
    for i in range(14):
        A(f"""    s_waitcnt vmcnt({13-i})
    s_mov_b32 s41, {WS_XF + 8192*16*i}
    buffer_store_dwordx4 {v(16+4*i,4)}, v4, s[4:7], s41 offen""")
    A("    s_waitcnt vmcnt(0)")
    for i in range(16):
        A(f"""    v_add_u32 v4, {8192*i}, v3
    v_and_b32 v5, 15, v4                  ; n
    v_bfe_u32 v6, v4, 4, 2                ; gB
    v_bfe_u32 v7, v4, 6, 1                ; half
    v_bfe_u32 v8, v4, 7, 1                ; T
    v_bfe_u32 v9, v4, 8, 1                ; u
    v_bfe_u32 v10, v4, 9, 2               ; w
    v_lshrrev_b32 v11, 11, v4             ; s
    v_lshlrev_b32 v11, 5, v11
    v_lshlrev_b32 v8, 4, v8
    v_add3_u32 v11, v11, v8, v5
    v_mul_u32_u24 v11, 896, v11
    v_mul_u32_u24 v10, 224, v10
    v_lshlrev_b32 v12, 2, v7
    v_add_u32 v12, v12, v6
    v_lshlrev_b32 v13, 4, v12             ; u0 : 16*j bytes
    v_lshrrev_b32 v14, 1, v12             ; g = j>>1
    v_lshlrev_b32 v15, 4, v14
    v_add_u32 v15, 128, v15               ; u1 even : (64 + 8g)*2
    v_lshlrev_b32 v14, 3, v14
    v_add_u32 v14, 192, v14               ; u1 odd : (96 + 4g)*2
    v_and_b32 v12, 1, v12
    v_and_b32 v12, v12, v9
    v_cmp_eq_u32 vcc, 1, v12
    s_nop 1
    v_cndmask_b32 v15, v15, v14, vcc
    v_cmp_eq_u32 s[42:43], 1, v9
    s_nop 1
    v_cndmask_b32 v13, v13, v15, s[42:43]
    v_add3_u32 v11, v11, v10, v13
    buffer_load_dwordx4 {v(16,4)}, v11, s[16:19], 0 offen
    s_waitcnt vmcnt(0)
    v_cndmask_b32 v18, v18, v17, vcc
    v_cndmask_b32 v17, v17, 0, vcc
    v_cndmask_b32 v19, v19, 0, vcc
    v_lshlrev_b32 v4, 4, v4
    s_mov_b32 s41, {WS_XS}
    buffer_store_dwordx4 {v(16,4)}, v4, s[4:7], s41 offen
    s_nop 1""")
    A(f"""    v_mov_b32 v16, -1
    v_mov_b32 v17, -1
    v_mov_b32 v18, -1
    v_mov_b32 v19, -1
    v_lshlrev_b32 v4, 4, v3""")
    def fill(base, nbytes):
        nchunk = nbytes // 16
        i = 0
        while i*8192 < nchunk:
            rem = nchunk - i*8192
            if rem >= 8192:
                A(f"    s_mov_b32 s41, {base + i*8192*16}\n    buffer_store_dwordx4 {v(16,4)}, v4, s[4:7], s41 offen")
            else:
                A(f"""    v_cmp_gt_u32 vcc, {rem}, v3
    v_mov_b32 v5, 0x7fff0000
    s_nop 0
    v_cndmask_b32 v5, v5, v4, vcc
    s_mov_b32 s41, {base + i*8192*16}
    buffer_store_dwordx4 {v(16,4)}, v5, s[4:7], s41 offen""")
            i += 1
    fill(WS_MEMF + MEM_SEG, 64*MEM_SEG)
    fill(WS_MEMX, 65*MEM_SEG)
    fill(WS_PM, 64*PM_SEG)
    A("    s_nop 1\n    v_mov_b32 v16, 0\n    v_mov_b32 v17, 0\n    v_mov_b32 v18, 0\n    v_mov_b32 v19, 0")
    fill(WS_CNT, 32768)
    A(f"""    v_and_b32 v5, 7, v3                   ; m
    v_bfe_u32 v6, v3, 3, 1                ; hs
    v_bfe_u32 v7, v3, 4, 2                ; gA
    v_lshrrev_b32 v8, 6, v3               ; kappa
    v_mul_u32_u24 v5, 896, v5
    v_lshlrev_b32 v8, 7, v8
    v_lshlrev_b32 v7, 5, v7
    v_lshlrev_b32 v6, 2, v6
    v_add3_u32 v5, v5, v8, v7
    v_add_u32 v5, v5, v6
    v_cmp_gt_u32 vcc, 448, v3
    v_mov_b32 v9, 0x7fff0000
    s_nop 0
    v_cndmask_b32 v5, v9, v5, vcc
    v_cndmask_b32 v9, v9, v4, vcc
    buffer_load_dword v16, v5, s[20:23], 0 offen
    buffer_load_dword v17, v5, s[20:23], 0 offen offset:8
    buffer_load_dword v18, v5, s[20:23], 0 offen offset:16
    buffer_load_dword v19, v5, s[20:23], 0 offen offset:24
    s_waitcnt vmcnt(0)
    s_mov_b32 s41, {WS_MEMF}
    buffer_store_dwordx4 {v(16,4)}, v9, s[4:7], s41 offen""")
    if k2c.GPROF: A("    s_waitcnt vmcnt(0)")
    gstamp(A, 0, 2)
    A(f"""{n}_end:
    s_endpgm""")
```

```python
from asmlib import *
from layout import *

S_SRD   = 4
S_STEP  = 8
S_WAVE  = 9
S_ROLE  = 10
S_IDX   = 11
S_DBG   = 12
S_MODE  = 16
S_TO    = 17
S_OUT   = 20
S_T0    = 24
NCHAIN = 30
LDS_ROLE = 163840 - 16
POLL_BUDGET = 1 << 22

def k2_prologue(A, name):
    A(f"""
{name}:
    s_cmp_ge_u32 s2, 256
    s_cbranch_scc1 {name}_end
    s_load_dwordx2 s[24:25], s[0:1], 64
    s_load_dwordx2 s[26:27], s[0:1], 72
    s_load_dwordx2 s[28:29], s[0:1], 56
    s_getreg_b32 s3, hwreg(HW_REG_XCC_ID)
    s_and_b32 s3, s3, 7
    v_lshrrev_b32 v1, 6, v0
    v_and_b32 v0, 63, v0
    s_nop 0
    v_readfirstlane_b32 s{S_WAVE}, v1
    s_waitcnt lgkmcnt(0)
    s_mov_b32 s4, s26
    s_mov_b32 s5, s27
    s_mov_b32 s6, 0x10000000
    s_mov_b32 s7, 0x00020000
    s_mov_b32 s12, s24
    s_mov_b32 s13, s25
    s_mov_b32 s14, 256
    s_mov_b32 s15, 0x00020000
    s_mov_b32 s20, s28
    s_mov_b32 s21, s29
    s_mov_b32 s22, {S*DM*2}
    s_mov_b32 s23, 0x00020000
    s_mov_b32 s{S_TO}, {POLL_BUDGET}
""")
    gstamp(A, 1, 0)
    A(f"""    s_cmp_lg_u32 s{S_WAVE}, 0
    s_cbranch_scc1 {name}_wait_role
    v_mov_b32 v2, 1
    s_lshl_b32 s24, s3, 2
    v_mov_b32 v3, s24
    s_mov_b64 exec, 1
    buffer_atomic_add v2, v3, s[12:15], 0 offen sc0
    s_waitcnt vmcnt(0)
    v_readfirstlane_b32 s25, v2
    s_mov_b64 exec, -1
    v_lshlrev_b32 v3, 2, v0
    v_and_b32 v3, 28, v3
{name}_reg_poll:
    buffer_load_dword v4, v3, s[12:15], 0 offen sc1
    s_waitcnt vmcnt(0)
""")
    for x in range(8):
        A(f"    v_readlane_b32 s{32+x}, v4, {x}")
    A("    s_nop 0")
    A("    s_add_u32 s26, s32, s33")
    for x in range(2, 8):
        A(f"    s_add_u32 s26, s26, s{32+x}")
    A(f"""
    s_cmp_ge_u32 s26, 256
    s_cbranch_scc1 {name}_reg_done
    s_cmp_eq_u32 s{S_TO}, 0
    s_cbranch_scc1 {name}_reg_done
    s_sub_u32 s{S_TO}, s{S_TO}, 1
    s_branch {name}_reg_poll
{name}_reg_done:
    s_mov_b32 s27, 99
""")
    for x in range(7, -1, -1):
        A(f"    s_cmp_ge_u32 s{32+x}, {NCHAIN}")
        A(f"    s_cselect_b32 s27, {x}, s27")
    A("    s_mov_b32 s28, 0\n    s_mov_b32 s29, 0\n    s_mov_b32 s30, 0")
    for x in range(8):
        A(f"""    s_cmp_gt_u32 s3, {x}
    s_cselect_b32 s31, s{32+x}, 0
    s_add_u32 s28, s28, s31
    s_cmp_eq_u32 s27, {x}
    s_cselect_b32 s31, 0, s31
    s_cselect_b32 s30, s{32+x}, s30
    s_add_u32 s29, s29, s31""")
    A(f"""
    s_cmp_eq_u32 s27, 99
    s_cbranch_scc1 {name}_slow_roles
    s_mov_b32 s{S_MODE}, 0
    s_cmp_eq_u32 s3, s27
    s_cbranch_scc1 {name}_on_chain_die
    s_add_u32 s31, s29, s25             ; q
    s_branch {name}_side_role
{name}_on_chain_die:
    s_cmp_lt_u32 s25, {NCHAIN}
    s_cbranch_scc1 {name}_chain_role_rank
    s_sub_u32 s31, 256, s30
    s_add_u32 s31, s31, s25
    s_sub_u32 s31, s31, {NCHAIN}
    s_branch {name}_side_role
{name}_chain_role_rank:
    s_mov_b32 s31, s25
    s_branch {name}_chain_role
{name}_slow_roles:
    s_mov_b32 s{S_MODE}, 1
    s_add_u32 s31, s28, s25
    s_cmp_lt_u32 s31, {NCHAIN}
    s_cbranch_scc1 {name}_chain_role
    s_sub_u32 s31, s31, {NCHAIN}
{name}_side_role:
    s_mov_b32 s{S_ROLE}, 5
    s_mov_b32 s{S_IDX}, 0
    s_cmp_lt_u32 s31, 212
    s_cselect_b32 s{S_ROLE}, 4, s{S_ROLE}
    s_cmp_lt_u32 s31, 128
    s_cselect_b32 s{S_ROLE}, 3, s{S_ROLE}
    s_cmp_lt_u32 s31, 64
    s_cselect_b32 s{S_ROLE}, 2, s{S_ROLE}
    s_sub_u32 s{S_IDX}, s31, 128
    s_cmp_ge_u32 s31, 224
    s_cbranch_scc0 {name}_not_helper
    s_mov_b32 s{S_ROLE}, 6
    s_sub_u32 s{S_IDX}, s31, 224
    s_branch {name}_role_done
{name}_not_helper:
    s_cmp_lt_u32 s31, 128
    s_cbranch_scc0 {name}_role_done
    s_and_b32 s{S_IDX}, s31, 63
    s_branch {name}_role_done
{name}_chain_role:
    s_mov_b32 s{S_ROLE}, 0
    s_mov_b32 s{S_IDX}, s31
    s_cmp_lt_u32 s31, 16
    s_cbranch_scc1 {name}_role_done
    s_mov_b32 s{S_ROLE}, 1
    s_sub_u32 s{S_IDX}, s31, 16
{name}_role_done:
    s_lshl_b32 s24, s{S_IDX}, 8
    s_or_b32 s24, s24, s{S_ROLE}
    s_lshl_b32 s25, s{S_MODE}, 16
    s_or_b32 s24, s24, s25
    v_mov_b32 v2, s24
    v_mov_b32 v3, {LDS_ROLE}
    ds_write_b32 v3, v2
    s_waitcnt lgkmcnt(0)
{name}_wait_role:
    s_barrier
    v_mov_b32 v3, {LDS_ROLE}
    ds_read_b32 v2, v3
    s_waitcnt lgkmcnt(0)
    v_readfirstlane_b32 s24, v2
    s_nop 1
    s_and_b32 s{S_ROLE}, s24, 255
    s_bfe_u32 s{S_IDX}, s24, 0x80008
    s_lshr_b32 s{S_MODE}, s24, 16
""")
    gstamp(A, 1, 1)
    if GPROF:
        A(f"""    s_lshl_b32 s92, s2, 5
    s_add_u32 s92, s92, {WS_PROF + 0x80000 + 8192 + 28}
    v_mov_b32 v254, s92
    v_mov_b32 v255, s24
    buffer_store_dword v255, v254, s[4:7], 0 offen""")

OUTLINE = []
def poll_tail(A, lab_poll, lab_go):
    A(f"    s_cbranch_vccnz {lab_poll}_retry")
    A(f"{lab_go}:")
    OUTLINE.append(f"""{lab_poll}_retry:
    s_cmp_eq_u32 s{S_TO}, 0
    s_cbranch_scc1 {lab_go}
    s_sub_u32 s{S_TO}, s{S_TO}, 1
    s_branch {lab_poll}""")
def flush_outline(A):
    for blk in OUTLINE: A(blk)
    OUTLINE.clear()

S_PROF = 58
STAMPS = None
TIMER = 's_memrealtime'
class Prof:
    def __init__(self, on): self.on = on; self.n = 0
    def init(self, A, slot_sgpr_expr):
        if not self.on: return
        A(f"""    s_lshl_b32 s{S_PROF}, {slot_sgpr_expr}, 2
    s_add_u32 s{S_PROF}, s{S_PROF}, s{S_WAVE}
    s_lshl_b32 s{S_PROF}, s{S_PROF}, 11
    s_add_u32 s{S_PROF}, s{S_PROF}, {WS_PROF}""")
    def stamp(self, A, k):
        if self.on and (STAMPS is None or k in STAMPS): A(f"    {TIMER} s[{60+2*k}:{61+2*k}]"); self.n = max(self.n, k+1)
    def flush(self, A, vt):
        if not self.on: return
        A("    s_waitcnt lgkmcnt(0)")
        A(f"    v_mov_b32 v{vt+1}, s{S_PROF}")
        for k in range(self.n):
            A(f"    v_mov_b32 v{vt}, s{60+2*k}")
            A(f"    buffer_store_dword v{vt}, v{vt+1}, s[4:7], 0 offen offset:{4*k}")
            A("    s_nop 1")
        A(f"    s_add_u32 s{S_PROF}, s{S_PROF}, 32")

GPROF = False
def gstamp(A, kern, k, vt=254, wg="s2", srd="s[4:7]"):
    if not GPROF: return
    A(f"""    s_memrealtime s[90:91]
    s_lshl_b32 s92, {wg}, 5
    s_add_u32 s92, s92, {WS_PROF + 0x80000 + 0}
    s_add_u32 s92, s92, {kern*8192 + 4*k}
    v_mov_b32 v{vt}, s92
    s_waitcnt lgkmcnt(0)
    v_mov_b32 v{vt+1}, s90
    buffer_store_dword v{vt+1}, v{vt}, {srd}, 0 offen
    s_nop 1""")
```

```python
from asmlib import *
from layout import *
from k2_common import *
V_POLL=2; V_L16=3; V_L128=4; V_F=8; V_T=16; V_J=18; V_C=19
S_MEM=44; S_MEMX=45; S_R=46; S_RS=47
def helper_role(A, prof=False):
    L = "hp"
    A(f"""{L}_start:
    v_lshlrev_b32 v{V_L16}, 4, v0
    v_lshlrev_b32 v{V_L128}, 7, v0
    s_mov_b32 s{S_STEP}, 0
    s_mov_b32 s{S_MEM}, {WS_MEMF}
    s_cmp_lg_u32 s{S_IDX}, 0
    s_cbranch_scc1 {L}_h1
    s_lshl_b32 s24, s{S_WAVE}, 1
    s_min_u32 s24, s24, 5
    s_lshl_b32 s25, s24, 10
    v_add_u32 v{V_POLL}, s25, v{V_L16}
    s_mov_b32 s{S_MEMX}, {WS_MEMX}
{L}_poll:
    buffer_load_dwordx4 {v(V_F,4)}, v{V_POLL}, s[4:7], s{S_MEM} offen sc1
    buffer_load_dwordx4 {v(V_F+4,4)}, v{V_POLL}, s[4:7], s{S_MEM} offen offset:1024 sc1
    s_waitcnt vmcnt(0)
    v_max3_u32 v{V_T}, v{V_F}, v{V_F+1}, v{V_F+2}
    v_max3_u32 v{V_T+1}, v{V_F+3}, v{V_F+4}, v{V_F+5}
    v_max3_u32 v{V_T}, v{V_T}, v{V_F+6}, v{V_F+7}
    v_max_u32 v{V_T}, v{V_T}, v{V_T+1}
    v_cmp_eq_u32 vcc, -1, v{V_T}
    s_cbranch_vccnz {L}_retry
{L}_go:
    buffer_store_dwordx4 {v(V_F,4)}, v{V_POLL}, s[4:7], s{S_MEMX} offen sc1
    buffer_store_dwordx4 {v(V_F+4,4)}, v{V_POLL}, s[4:7], s{S_MEMX} offen offset:1024 sc1
    s_add_u32 s{S_STEP}, s{S_STEP}, 1
    s_add_u32 s{S_MEM}, s{S_MEM}, {MEM_SEG}
    s_add_u32 s{S_MEMX}, s{S_MEMX}, {MEM_SEG}
    s_cmp_lt_u32 s{S_STEP}, 64
    s_cbranch_scc1 {L}_poll
    s_waitcnt vmcnt(0)
    s_endpgm
{L}_retry:
    s_cmp_eq_u32 s{S_TO}, 0
    s_cbranch_scc1 {L}_go
    s_sub_u32 s{S_TO}, s{S_TO}, 1
    s_sleep 1
    s_branch {L}_poll
{L}_h1:
    s_cmp_eq_u32 s{S_WAVE}, 3
    s_cbranch_scc1 {L}_end
    s_mov_b32 s{S_R}, {WS_PM + 2*PM_SEG}
    s_mov_b32 s{S_RS}, {PM_SEG}
    s_mov_b32 s25, 64
    s_cmp_eq_u32 s{S_WAVE}, 1
    s_cselect_b32 s24, 8192, 0
    s_cselect_b32 s25, 16, s25
    s_add_u32 s{S_R}, s{S_R}, s24
    s_cmp_eq_u32 s{S_WAVE}, 2
    s_cselect_b32 s{S_R}, {WS_MEMF + 3*MEM_SEG}, s{S_R}
    s_cselect_b32 s{S_RS}, {MEM_SEG}, s{S_RS}
    s_cselect_b32 s25, 56, s25
    v_mov_b32 v{V_T}, 0x7fff0000
    v_cmp_gt_u32 vcc, s25, v0
    s_nop 1
    v_cndmask_b32 v{V_C}, v{V_T}, v{V_L128}, vcc
    v_mov_b32 v{V_POLL}, {6*1024 + 1008}
{L}_poll1:
    buffer_load_dword v{V_T}, v{V_POLL}, s[4:7], s{S_MEM} offen sc1
    s_waitcnt vmcnt(0)
    v_cmp_eq_u32 vcc, -1, v{V_T}
    s_cbranch_vccnz {L}_retry1
{L}_go1:
    buffer_load_dword v{V_J}, v{V_C}, s[4:7], s{S_R} offen sc1
    s_add_u32 s{S_R}, s{S_R}, s{S_RS}
    s_add_u32 s{S_STEP}, s{S_STEP}, 1
    s_add_u32 s{S_MEM}, s{S_MEM}, {MEM_SEG}
    s_cmp_lt_u32 s{S_STEP}, 61
    s_cbranch_scc1 {L}_poll1
{L}_end:
    s_endpgm
{L}_retry1:
    s_cmp_eq_u32 s{S_TO}, 0
    s_cbranch_scc1 {L}_go1
    s_sub_u32 s{S_TO}, s{S_TO}, 1
    s_sleep 2
    s_branch {L}_poll1""")
```

```python
from asmlib import *
from layout import *
from k2_common import *
import k2_common
def GPROF_on(): return k2_common.GPROF

def W8(sig): return a(8*sig, 8) if sig < 32 else v(120 + 8*(sig-32), 8)
def W4(sig, half): return a(8*sig+4*half, 4) if sig < 32 else v(120 + 8*(sig-32) + 4*half, 4)

S_H=44; S_GRP=45; S_SEG=46; S_XG=47; S_XL=48; S_I=49; S_A0=50; S_A1=51; S_A2=52; S_PREV=53; S_W7=54
V_L16=1; V_ONE=2; V_CA=3

def head_group(A):
    A(f"""    s_and_b32 s{S_H}, s{S_IDX}, 7
    s_lshr_b32 s24, s{S_IDX}, 5
    s_lshl_b32 s24, s24, 3
    s_add_u32 s{S_H}, s{S_H}, s24
    s_bfe_u32 s{S_GRP}, s{S_IDX}, 0x20003
    v_lshlrev_b32 v{V_L16}, 4, v0
    v_mov_b32 v{V_ONE}, 1
    s_mul_i32 s{S_W7}, s{S_WAVE}, 7168""")

def xf_dma(sx):
    l = [f"    s_add_u32 s24, s{S_XL}, s{S_W7}", "    s_mov_b32 m0, s24", f"    s_add_u32 s25, {sx}, s{S_W7}"]
    for i in range(4): l.append(f"    buffer_load_dwordx4 v{V_L16}, s[4:7], s25 offen offset:{1024*i} lds")
    l += ["    s_add_u32 s24, s24, 4096", "    s_mov_b32 m0, s24", "    s_add_u32 s25, s25, 4096"]
    for i in range(3): l.append(f"    buffer_load_dwordx4 v{V_L16}, s[4:7], s25 offen offset:{1024*i} lds")
    return l

def signal(A, L, tag, cnt_base, sseg):
    A(f"""    s_cmp_lg_u32 s{S_WAVE}, 0
    s_cbranch_scc1 {L}_nosig{tag}
    s_lshl_b32 s24, {sseg}, 7
    s_add_u32 s24, s24, {cnt_base}
    v_mov_b32 v{V_CA}, s24
    s_mov_b64 exec, 1
    buffer_atomic_add v{V_ONE}, v{V_CA}, s[4:7], 0 offen
    s_mov_b64 exec, -1
{L}_nosig{tag}:""")

def wait_counter(A, L, tag, cnt_base, sseg, vt, target=16):
    A(f"""    s_lshl_b32 s24, {sseg}, 7
    s_add_u32 s24, s24, {cnt_base}
    v_mov_b32 v{vt+1}, s24
{L}_wc{tag}:
    buffer_load_dword v{vt}, v{vt+1}, s[4:7], 0 offen sc1
    s_waitcnt vmcnt(0)
    v_readfirstlane_b32 s25, v{vt}
    s_nop 0
    s_cmp_ge_u32 s25, {target}
    s_cbranch_scc1 {L}_wc{tag}_go
    s_cmp_eq_u32 s{S_TO}, 0
    s_cbranch_scc1 {L}_wc{tag}_go
    s_sub_u32 s{S_TO}, s{S_TO}, 1
    s_sleep 2
    s_branch {L}_wc{tag}
{L}_wc{tag}_go:""")

def dp_role(A, prof=False):
    L = "dp"
    V_XA=4; V_IDX=5; V_UO=6; V_UO6=7
    V_ACC=8
    V_X=64
    V_T=80
    V_F=88
    def ACC(t, tt): return V_ACC + (t*2+tt)*4
    A(f"{L}_start:")
    head_group(A)
    A(f"""    v_lshrrev_b32 v8, 4, v0               ; g'
    v_and_b32 v9, 15, v0                  ; i'
    v_bfe_u32 v10, v9, 3, 1
    v_lshlrev_b32 v10, 4, v10
    v_bfe_u32 v11, v9, 1, 1
    v_lshlrev_b32 v11, 3, v11
    v_bfe_u32 v12, v9, 2, 1
    v_lshlrev_b32 v12, 2, v12
    v_and_b32 v13, 1, v9
    v_add3_u32 v10, v10, v11, v12
    v_add_u32 v10, v10, v13
    v_lshlrev_b32 v10, 4, v10
    v_lshlrev_b32 v11, 9, v8
    v_add_u32 v{V_XA}, v10, v11
    v_bfe_u32 v10, v0, 3, 1
    v_mul_u32_u24 v{V_IDX}, 0xaaaa, v10
    v_add_u32 v{V_IDX}, 0x4444, v{V_IDX}
    v_lshrrev_b32 v10, 5, v0
    v_lshlrev_b32 v10, 8, v10
    v_lshlrev_b32 v11, 4, v9
    v_and_b32 v12, 1, v8
    v_lshlrev_b32 v12, 3, v12
    v_add3_u32 v{V_UO}, v10, v11, v12
    v_mov_b32 v10, 0x7fff0000
    v_cmp_gt_u32 vcc, 32, v0
    s_nop 1
    v_cndmask_b32 v{V_UO6}, v10, v{V_UO}, vcc
""")
    for t in range(7):
        A(f"""    s_mul_i32 s24, s{S_WAVE}, 7
    s_add_u32 s24, s24, {t}
    s_lshr_b32 s25, s24, 1
    s_and_b32 s24, s24, 1
    s_lshl_b32 s25, s25, 4
    s_add_u32 s25, s25, s{S_H}
    s_lshl_b32 s25, s25, 1
    s_add_u32 s25, s25, s24
    s_mul_i32 s{60+t}, s25, 1024
    s_mul_i32 s25, s25, {7*2048}
    s_add_u32 s25, s25, {WS_CF}""")
        for k in range(7):
            A(f"    buffer_load_dwordx4 {W4(t*7+k,0)}, v{V_L16}, s[4:7], s25 offen")
            A(f"    buffer_load_dwordx4 {W4(t*7+k,1)}, v{V_L16}, s[4:7], s25 offen offset:1024")
            if k < 6: A("    s_add_u32 s25, s25, 2048")
    A(f"""    s_mov_b32 s{S_SEG}, s{S_GRP}
    s_mul_i32 s{S_XG}, s{S_SEG}, {XF_SEG}
    s_add_u32 s{S_XG}, s{S_XG}, {WS_XF}
    s_mov_b32 s{S_XL}, 0""")
    A("\n".join(xf_dma(f"s{S_XG}")))
    if GPROF_on(): A("    s_waitcnt vmcnt(0)")
    gstamp(A, 1, 2, 80)
    A(f"""    s_mov_b32 s{S_I}, 0
{L}_loop:
    s_waitcnt vmcnt(0)
    s_barrier
    s_cmp_eq_u32 s{S_I}, 0
    s_cbranch_scc1 {L}_first""")
    signal(A, L, "a", CNT_D, f"s{S_PREV}")
    A(f"""{L}_first:
    s_cmp_eq_u32 s{S_I}, 15
    s_cbranch_scc1 {L}_nodma
    s_add_u32 s{S_XG}, s{S_XG}, {4*XF_SEG}
    s_xor_b32 s{S_XL}, s{S_XL}, 32768""")
    A("\n".join(xf_dma(f"s{S_XG}")))
    A(f"{L}_nodma:")
    def rd(kp, buf):
        return [f"    ds_read_b128 {v(V_X+8*buf,4)}, v{V_XA} offset:{2048*kp}", f"    ds_read_b128 {v(V_X+8*buf+4,4)}, v{V_XA} offset:{2048*kp+32}"]
    A("\n".join(rd(0, 0)))
    for kp in range(14):
        b = kp & 1
        A("    s_waitcnt lgkmcnt(0)")
        if kp < 13: A("\n".join(rd(kp+1, 1-b)))
        for t in range(7):
            for tt in range(2):
                c = "0" if kp == 0 else v(ACC(t,tt),4)
                A(f"    v_mfma_f32_16x16x32_bf16 {v(ACC(t,tt),4)}, {v(V_X+8*b+4*tt,4)}, {W4(t*7+(kp>>1), kp&1)}, {c}")
    A(f"""    s_mul_i32 s26, s{S_SEG}, {NJ*DF_SJ}
    s_add_u32 s26, s26, {WS_DF}""")
    for t in range(7):
        T = V_T + 4*(t&1)
        a0, a1 = ACC(t,0), ACC(t,1)
        A(f"""    v_cvt_pk_bf16_f32 v{T}, v{a0}, v{a0+1}
    v_cvt_pk_bf16_f32 v{T+1}, v{a0+2}, v{a0+3}
    v_cvt_pk_bf16_f32 v{T+2}, v{a1}, v{a1+1}
    v_cvt_pk_bf16_f32 v{T+3}, v{a1+2}, v{a1+3}
    s_add_u32 s27, s26, s{60+t}
    buffer_store_dwordx4 {v(T,4)}, v{V_L16}, s[4:7], s27 offen sc1""")
    A(f"""    s_mov_b32 s{S_PREV}, s{S_SEG}
    s_add_u32 s{S_SEG}, s{S_SEG}, 4
    v_xor_b32 v{V_XA}, 32768, v{V_XA}
    s_add_u32 s{S_I}, s{S_I}, 1
    s_cmp_lt_u32 s{S_I}, 16
    s_cbranch_scc1 {L}_loop
    s_waitcnt vmcnt(0)
    s_barrier""")
    signal(A, L, "b", CNT_D, f"s{S_PREV}")
    gstamp(A, 1, 4, 80)
    A(f"""    s_mov_b32 s{S_SEG}, s{S_GRP}
    s_mov_b32 s{S_I}, 0
{L}_uloop:
    s_mul_i32 s26, s{S_SEG}, {MEM_SEG}
    s_add_u32 s26, s26, {WS_MEMX}
{L}_upoll:""")
    for k in range(7):
        A(f"    buffer_load_dwordx4 {v(V_F+4*k,4)}, v{V_L16}, s[4:7], s26 offen offset:{1024*k if k < 4 else 0} sc1" if k < 4 else
          f"    buffer_load_dwordx4 {v(V_F+4*k,4)}, v{V_L16}, s[4:7], s27 offen offset:{1024*(k-4)} sc1")
        if k == 3: A("    s_add_u32 s27, s26, 4096")
    A("    s_waitcnt vmcnt(0)")
    T = V_T
    A(f"    v_max3_u32 v{T}, v{V_F}, v{V_F+1}, v{V_F+2}")
    for r in range(3, 27, 2):
        A(f"    v_max3_u32 v{T}, v{T}, v{V_F+r}, v{V_F+r+1}")
    A(f"    v_max_u32 v{T}, v{T}, v{V_F+27}")
    A(f"""    v_cmp_eq_u32 vcc, -1, v{T}
    s_cbranch_vccnz {L}_uretry""")
    OUTLINE.append(f"""{L}_uretry:
    s_cmp_eq_u32 s{S_TO}, 0
    s_cbranch_scc1 {L}_ugo
    s_sub_u32 s{S_TO}, s{S_TO}, 1
    s_sleep 4
    s_branch {L}_upoll""")
    A(f"{L}_ugo:")
    for t in range(7):
        for r in range(4): A(f"    v_mov_b32 v{V_ACC+4*t+r}, 0")
    for r in range(4): A(f"    v_mov_b32 v{V_ACC+28+r}, 0")
    for k in range(7):
        for t in range(7):
            A(f"    v_smfmac_f32_16x16x64_bf16 {v(V_ACC+4*t,4)}, {v(V_F+4*k,4)}, {W8(t*7+k)}, v{V_IDX}")
    A(f"""    s_lshl_b32 s26, s{S_SEG}, 4
    s_add_u32 s26, s26, s{S_H}
    s_mul_i32 s26, s26, {UX_SH}
    s_mul_i32 s27, s{S_WAVE}, {7*256}
    s_add_u32 s26, s26, s27
    s_add_u32 s26, s26, {WS_UX}
    s_nop 7""")
    for p in range(4):
        xa = V_ACC + 8*p; xb = xa + 4
        if p == 3:
            for r in range(4): A(f"    v_mov_b32 v{xb+r}, v{xa+r}")
        for r in range(4): A(f"    v_permlane32_swap_b32 v{xa+r}, v{xb+r}")
        for r in range(4): A(f"    v_add_f32 v{xa+r}, v{xa+r}, v{xb+r}")
        A(f"""    v_cvt_pk_bf16_f32 v{xa}, v{xa}, v{xa+1}
    v_cvt_pk_bf16_f32 v{xa+1}, v{xa+2}, v{xa+3}
    buffer_store_dwordx2 {v(xa,2)}, v{V_UO if p < 3 else V_UO6}, s[4:7], s26 offen offset:{512*p} sc1""")
    A(f"""    s_waitcnt vmcnt(0)
    s_barrier""")
    signal(A, L, "c", CNT_U, f"s{S_SEG}")
    A(f"""    s_add_u32 s{S_SEG}, s{S_SEG}, 4
    s_add_u32 s{S_I}, s{S_I}, 1
    s_cmp_lt_u32 s{S_I}, 16
    s_cbranch_scc1 {L}_uloop""")
    gstamp(A, 1, 3, 80)
    A("    s_endpgm")
    flush_outline(A)

def ts_role(A, prof=False):
    L = "ts"
    L_X = 0; L_MEM = 65536; L_PART = 73728
    V_XB=4; V_X01=5; V_X2=6; V_X3=7
    V_ACC=8
    V_X=64
    V_M01=80; V_M2=81; V_M3=82; V_POLL=83; V_STW=84; V_PW=85; V_PR=86; V_DQ=87; V_PXM=88; V_T=90
    def ACC(t, tt): return V_ACC + (t*2+tt)*4
    A(f"{L}_start:")
    head_group(A)
    A(f"""    v_lshrrev_b32 v8, 4, v0               ; g'
    v_and_b32 v9, 15, v0                  ; n / i'
    v_lshlrev_b32 v10, 9, v8
    v_lshlrev_b32 v11, 4, v9
    v_add_u32 v{V_XB}, v10, v11           ; B operand : g'*512 + n*16
    v_bfe_u32 v10, v9, 3, 1
    v_lshlrev_b32 v10, 4, v10
    v_bfe_u32 v11, v9, 1, 1
    v_lshlrev_b32 v11, 3, v11
    v_bfe_u32 v12, v9, 2, 1
    v_lshlrev_b32 v12, 2, v12
    v_and_b32 v13, 1, v9
    v_add3_u32 v10, v10, v11, v12
    v_add_u32 v10, v10, v13
    v_lshlrev_b32 v10, 4, v10             ; tok*16
    s_mul_i32 s24, s{S_WAVE}, {14*512}
    v_add_u32 v10, s24, v10
    v_lshlrev_b32 v11, 10, v8             ; 2g'*512
    v_add_u32 v{V_X01}, v10, v11
    v_lshlrev_b32 v11, 9, v8
    v_add3_u32 v{V_X2}, v10, v11, 0
    v_add_u32 v{V_X2}, {8*512}, v{V_X2}
    v_lshrrev_b32 v11, 1, v8
    v_lshlrev_b32 v11, 9, v11
    v_and_b32 v12, 1, v8
    v_lshlrev_b32 v12, 3, v12
    v_add3_u32 v{V_X3}, v10, v11, v12
    v_add_u32 v{V_X3}, {12*512}, v{V_X3}
    v_and_b32 v10, 7, v9
    v_lshlrev_b32 v10, 4, v10
    s_mul_i32 s24, s{S_WAVE}, {7*256}
    s_add_u32 s24, s24, {L_MEM}
    v_add_u32 v10, s24, v10
    v_lshlrev_b32 v11, 8, v8
    v_add_u32 v{V_M01}, v10, v11
    v_lshrrev_b32 v11, 1, v8
    v_lshlrev_b32 v11, 8, v11
    v_add3_u32 v{V_M2}, v10, v11, v12
    v_add_u32 v{V_M2}, 1024, v{V_M2}
    v_lshlrev_b32 v11, 2, v8
    v_add_u32 v{V_M3}, v10, v11
    v_add_u32 v{V_M3}, 1536, v{V_M3}
    s_lshl_b32 s24, s{S_WAVE}, 1
    s_min_u32 s24, s24, 5
    s_lshl_b32 s24, s24, 10
    v_add_u32 v{V_POLL}, s24, v{V_L16}
    v_add_u32 v{V_STW}, {L_MEM}, v{V_POLL}
    s_mul_i32 s24, s{S_WAVE}, 6144
    s_add_u32 s24, s24, {L_PART}
    v_add_u32 v{V_PW}, s24, v{V_L16}
    s_and_b32 s24, s{S_WAVE}, 1
    s_mul_i32 s25, s24, 3072
    s_add_u32 s25, s25, {L_PART}
    v_add_u32 v{V_PR}, s25, v{V_L16}
    s_lshl_b32 s25, s24, 4
    v_add_u32 v10, s25, v9
    v_lshrrev_b32 v11, 1, v8
    v_lshlrev_b32 v11, 4, v11
    v_sub_u32 v10, v10, v11
    v_and_b32 v11, 1, v8
    v_lshlrev_b32 v11, 2, v11
    v_sub_u32 v{V_DQ}, v10, v11
    v_add_u32 v10, s25, v9
    v_lshlrev_b32 v10, 4, v10
    v_lshlrev_b32 v11, 3, v8
    v_add_u32 v10, v10, v11
    v_mov_b32 v11, 0x7fff0000
    v_cmp_gt_u32 vcc, 2, v8
    s_nop 1
    v_cndmask_b32 v{V_PXM}, v11, v10, vcc
    s_lshl_b32 s24, s{S_H}, 2
    s_add_u32 s24, s24, s{S_WAVE}
    s_mul_i32 s24, s24, {49*2048}
    s_add_u32 s24, s24, {WS_AF}""")
    for t in range(7):
        for k in range(7):
            A(f"    buffer_load_dwordx4 {W4(t*7+k,0)}, v{V_L16}, s[4:7], s24 offen")
            A(f"    buffer_load_dwordx4 {W4(t*7+k,1)}, v{V_L16}, s[4:7], s24 offen offset:1024")
            A("    s_add_u32 s24, s24, 2048")
    A(f"""    v_mov_b32 v90, 0
    v_mov_b32 v91, 0
    v_lshlrev_b32 v92, 3, v0
    v_add_u32 v92, {L_MEM+7168}, v92
    ds_write_b64 v92, v[90:91]
    s_mov_b32 s{S_SEG}, s{S_GRP}
    s_mul_i32 s{S_XG}, s{S_SEG}, {XF_SEG}
    s_add_u32 s{S_XG}, s{S_XG}, {WS_XF}
    s_mov_b32 s{S_XL}, 0""")
    A("\n".join(xf_dma(f"s{S_XG}")))
    if GPROF_on(): A("    s_waitcnt vmcnt(0)")
    gstamp(A, 1, 2, 90)
    A(f"""    s_mov_b32 s{S_I}, 0
    s_mov_b32 s{S_A0}, 0x3DB8AA3B
{L}_loop:
    s_waitcnt vmcnt(0) lgkmcnt(0)
    s_barrier
    s_cmp_eq_u32 s{S_I}, 0
    s_cbranch_scc1 {L}_first""")
    signal(A, L, "a", CNT_PX, f"s{S_PREV}")
    A(f"""{L}_first:
    s_cmp_eq_u32 s{S_I}, 15
    s_cbranch_scc1 {L}_nodma
    s_add_u32 s{S_XG}, s{S_XG}, {4*XF_SEG}
    s_xor_b32 s{S_XL}, s{S_XL}, 32768""")
    A("\n".join(xf_dma(f"s{S_XG}")))
    A(f"{L}_nodma:")
    def rd(kp, buf):
        return [f"    ds_read_b128 {v(V_X+8*buf,4)}, v{V_XB} offset:{2048*kp}", f"    ds_read_b128 {v(V_X+8*buf+4,4)}, v{V_XB} offset:{2048*kp+256}"]
    A("\n".join(rd(0, 0)))
    for kp in range(14):
        b = kp & 1
        A("    s_waitcnt lgkmcnt(0)")
        if kp < 13: A("\n".join(rd(kp+1, 1-b)))
        for t in range(7):
            for tt in range(2):
                c = "0" if kp == 0 else v(ACC(t,tt),4)
                A(f"    v_mfma_f32_16x16x32_bf16 {v(ACC(t,tt),4)}, {W4(t*7+(kp>>1), kp&1)}, {v(V_X+8*b+4*tt,4)}, {c}")
    A("    s_nop 7")
    for tt in range(2):
        for p in range(3):
            x, y = ACC(2*p,tt), ACC(2*p+1,tt)
            A(f"""    v_cvt_pk_bf16_f32 v{x}, v{x}, v{x+1}
    v_cvt_pk_bf16_f32 v{x+1}, v{y}, v{y+1}
    v_cvt_pk_bf16_f32 v{x+2}, v{x+2}, v{x+3}
    v_cvt_pk_bf16_f32 v{x+3}, v{y+2}, v{y+3}""")
        z = ACC(6,tt)
        A(f"""    v_cvt_pk_bf16_f32 v{z}, v{z}, v{z+1}
    v_cvt_pk_bf16_f32 v{z+1}, v{z+2}, v{z+3}""")
    F = V_T
    A(f"""    s_mul_i32 s26, s{S_SEG}, {MEM_SEG}
    s_add_u32 s26, s26, {WS_MEMX}
{L}_poll:
    buffer_load_dwordx4 {v(F,4)}, v{V_POLL}, s[4:7], s26 offen sc1
    buffer_load_dwordx4 {v(F+4,4)}, v{V_POLL}, s[4:7], s26 offen offset:1024 sc1
    s_waitcnt vmcnt(0)
    ds_write_b128 v{V_STW}, {v(F,4)}
    ds_write_b128 v{V_STW}, {v(F+4,4)} offset:1024
    v_max3_u32 v{F+8}, v{F}, v{F+1}, v{F+2}
    v_max3_u32 v{F+9}, v{F+3}, v{F+4}, v{F+5}
    v_max3_u32 v{F+8}, v{F+8}, v{F+6}, v{F+7}
    v_max_u32 v{F+8}, v{F+8}, v{F+9}
    v_cmp_eq_u32 vcc, -1, v{F+8}
    s_cbranch_vccnz {L}_retry
{L}_go:
    s_waitcnt lgkmcnt(0)
    s_barrier""")
    OUTLINE.append(f"""{L}_retry:
    s_cmp_eq_u32 s{S_TO}, 0
    s_cbranch_scc1 {L}_go
    s_sub_u32 s{S_TO}, s{S_TO}, 1
    s_sleep 4
    s_branch {L}_poll""")
    def SA(T3, tt): return ACC(2*T3+1, tt)
    K = V_X
    reads = []
    for T3 in range(3):
        for p in range(4):
            if T3 < 2:
                o = 32*T3
                if p == 0: r = [f"    ds_read_b128 BUF4, v{V_X01} offset:{o}"]
                elif p == 1: r = [f"    ds_read_b128 BUF4, v{V_X01} offset:{o+512}"]
                elif p == 2: r = [f"    ds_read_b128 BUF4, v{V_X2} offset:{o}"]
                else: r = [f"    ds_read_b64 BUF2, v{V_X3} offset:{o}"]
            else:
                if p == 0: r = [f"    ds_read2_b32 BUFa, v{V_M01} offset0:0 offset1:32", f"    ds_read2_b32 BUFb, v{V_M01} offset0:1 offset1:33"]
                elif p == 1: r = [f"    ds_read2_b32 BUFa, v{V_M01} offset0:2 offset1:34", f"    ds_read2_b32 BUFb, v{V_M01} offset0:3 offset1:35"]
                elif p == 2: r = [f"    ds_read2_b32 BUFa, v{V_M2} offset0:0 offset1:32", f"    ds_read2_b32 BUFb, v{V_M2} offset0:1 offset1:33"]
                else: r = [f"    ds_read2_b32 BUFa, v{V_M3} offset0:0 offset1:32"]
            reads.append((T3, p, r))
    for T3 in range(3):
        for (t3, p, r) in reads:
            if t3 != T3: continue
            b = K + 4*p
            for ln in r: A(ln.replace("BUF4", v(b,4)).replace("BUF2", v(b,2)).replace("BUFa", v(b,2)).replace("BUFb", v(b+2,2)))
        A("    s_waitcnt lgkmcnt(0)")
        for p in range(4):
            for tt in range(2):
                c = "0" if p == 0 else v(SA(T3,tt),4)
                if p < 3: A(f"    v_mfma_f32_16x16x32_bf16 {v(SA(T3,tt),4)}, {v(K+4*p,4)}, {v(ACC(2*p,tt),4)}, {c}")
                else: A(f"    v_mfma_f32_16x16x16_bf16 {v(SA(T3,tt),4)}, {v(K+12,2)}, {v(ACC(6,tt),2)}, {c}")
    A("    s_nop 7")
    for tt in range(2):
        for T3 in range(3):
            A(f"    ds_write_b128 v{V_PW}, {v(SA(T3,tt),4)} offset:{(tt*3+T3)*1024}")
    A(f"""    s_waitcnt lgkmcnt(0)
    s_barrier
    s_cmp_ge_u32 s{S_WAVE}, 2
    s_cbranch_scc1 {L}_nosm""")
    R = V_ACC
    for w in range(4):
        for T3 in range(3):
            A(f"    ds_read_b128 {v(R+12*w+4*T3,4)}, v{V_PR} offset:{w*6144 + T3*1024}")
    A("    s_waitcnt lgkmcnt(0)")
    for i in range(0, 12, 2):
        A(f"    v_pk_add_f32 {v(R+i,2)}, {v(R+i,2)}, {v(R+12+i,2)}")
        A(f"    v_pk_add_f32 {v(R+24+i,2)}, {v(R+24+i,2)}, {v(R+36+i,2)}")
    for i in range(0, 12, 2):
        A(f"    v_pk_add_f32 {v(R+i,2)}, {v(R+i,2)}, {v(R+24+i,2)}")
    NI = R+12
    A(f"    v_mov_b32 v{NI}, 0xff800000")
    for T in range(2):
        for r in range(4):
            k = 8*(r>>1) + 2*T + (r&1)
            A(f"""    v_cmp_le_i32 vcc, {k}, v{V_DQ}
    s_nop 1
    v_cndmask_b32 v{R+4*T+r}, v{NI}, v{R+4*T+r}, vcc""")
    A("    v_cmp_gt_u32 vcc, 32, v0\n    s_nop 1")
    for r in range(4): A(f"    v_cndmask_b32 v{R+8+r}, v{NI}, v{R+8+r}, vcc")
    MX = R+13; TT = R+14
    A(f"""    v_max3_f32 v{MX}, v{R}, v{R+1}, v{R+2}
    v_max3_f32 v{TT}, v{R+3}, v{R+4}, v{R+5}
    v_max3_f32 v{MX}, v{MX}, v{R+6}, v{R+7}
    v_max3_f32 v{TT}, v{TT}, v{R+8}, v{R+9}
    v_max3_f32 v{MX}, v{MX}, v{R+10}, v{R+11}
    v_max_f32 v{MX}, v{MX}, v{TT}""")
    def cross(op, r, t):
        A(f"""    v_mov_b32 v{t}, v{r}
    v_permlane16_swap_b32 v{r}, v{t}
    {op} v{r}, v{r}, v{t}
    v_mov_b32 v{t}, v{r}
    v_permlane32_swap_b32 v{r}, v{t}
    {op} v{r}, v{r}, v{t}""")
    cross("v_max_f32", MX, TT)
    A(f"    v_mul_f32 v{MX}, s{S_A0}, v{MX}")
    for i in range(12): A(f"    v_fma_f32 v{R+i}, v{R+i}, s{S_A0}, -v{MX}")
    for i in range(12): A(f"    v_exp_f32 v{R+i}, v{R+i}")
    A("    s_nop 0")
    A(f"    v_add_f32 v{MX}, v{R}, v{R+1}")
    for i in range(2, 12): A(f"    v_add_f32 v{MX}, v{MX}, v{R+i}")
    cross("v_add_f32", MX, TT)
    A(f"    v_rcp_f32 v{MX}, v{MX}\n    s_nop 0")
    for i in range(12): A(f"    v_mul_f32 v{R+i}, v{R+i}, v{MX}")
    O = R+16
    for i in range(6): A(f"    v_cvt_pk_bf16_f32 v{O+i}, v{R+2*i}, v{R+2*i+1}")
    A(f"""    s_lshl_b32 s24, s{S_SEG}, 4
    s_add_u32 s24, s24, s{S_H}
    s_lshl_b32 s25, s24, 11
    s_lshl_b32 s26, s{S_WAVE}, 10
    s_add_u32 s25, s25, s26
    s_add_u32 s25, s25, {WS_PXX}
    buffer_store_dwordx4 {v(O,4)}, v{V_L16}, s[4:7], s25 offen sc1
    s_lshl_b32 s25, s24, 9
    s_add_u32 s25, s25, {WS_PXM}
    buffer_store_dwordx2 {v(O+4,2)}, v{V_PXM}, s[4:7], s25 offen sc1
{L}_nosm:
    s_mov_b32 s{S_PREV}, s{S_SEG}
    s_add_u32 s{S_SEG}, s{S_SEG}, 4""")
    for r in (V_XB, V_X01, V_X2, V_X3): A(f"    v_xor_b32 v{r}, 32768, v{r}")
    A(f"""    s_add_u32 s{S_I}, s{S_I}, 1
    s_cmp_lt_u32 s{S_I}, 16
    s_cbranch_scc1 {L}_loop
    s_waitcnt vmcnt(0)
    s_barrier""")
    signal(A, L, "b", CNT_PX, f"s{S_PREV}")
    gstamp(A, 1, 3, 90)
    A("    s_endpgm")
    flush_outline(A)

def to_role(A, prof=False):
    L = "to"
    V_D=8; V_U=72; V_PX=88; V_PM=152; V_ACC=168; V_T=172
    V_UO=4; V_PMO=5; V_OO=6
    S_J=44; S_CT=50; S_TT=51
    A(f"""{L}_start:
    s_cmp_ge_u32 s{S_IDX}, 84
    s_cbranch_scc1 {L}_end
    s_mul_i32 s{S_GRP}, s{S_IDX}, 4682      ; /14
    s_lshr_b32 s{S_GRP}, s{S_GRP}, 16
    s_mul_i32 s24, s{S_GRP}, 14
    s_sub_u32 s{S_J}, s{S_IDX}, s24
    s_and_b32 s{S_CT}, s{S_WAVE}, 1
    s_lshr_b32 s{S_TT}, s{S_WAVE}, 1
    v_lshlrev_b32 v{V_L16}, 4, v0
    v_lshrrev_b32 v8, 4, v0               ; g
    v_and_b32 v9, 15, v0                  ; n
    ; u : UX[s][4q+g][T][n] -> g*7168 + T*256 + n*16
    v_mul_u32_u24 v10, {UX_SH}, v8
    v_lshlrev_b32 v11, 4, v9
    s_lshl_b32 s24, s{S_J}, 1
    s_add_u32 s24, s24, s{S_CT}
    s_lshl_b32 s24, s24, 8
    v_add3_u32 v{V_UO}, v10, v11, s24
    v_lshlrev_b32 v10, 9, v8
    s_lshl_b32 s24, s{S_TT}, 8
    v_add3_u32 v{V_PMO}, v10, v11, s24
    s_lshl_b32 s24, s{S_TT}, 4
    v_add_u32 v10, s24, v9
    v_mul_u32_u24 v10, 896, v10
    v_and_b32 v11, 1, v8
    v_lshlrev_b32 v11, 4, v11
    v_lshrrev_b32 v12, 1, v8
    v_lshlrev_b32 v12, 3, v12
    v_add3_u32 v10, v10, v11, v12
    s_lshl_b32 s24, s{S_J}, 6
    s_lshl_b32 s25, s{S_CT}, 5
    s_add_u32 s24, s24, s25
    v_add_u32 v{V_OO}, s24, v10
    s_mov_b32 s{S_SEG}, s{S_GRP}
{L}_loop:""")
    wait_counter(A, L, "d", CNT_D, f"s{S_SEG}", V_T)
    A(f"""    s_mul_i32 s26, s{S_SEG}, {NJ*DF_SJ}
    s_lshl_b32 s27, s{S_J}, 15
    s_add_u32 s26, s26, s27
    s_lshl_b32 s27, s{S_CT}, 10
    s_add_u32 s26, s26, s27
    s_add_u32 s26, s26, {WS_DF}""")
    for h in range(16):
        if h % 2 == 0 and h: A("    s_add_u32 s26, s26, 4096")
        A(f"    buffer_load_dwordx4 {v(V_D+4*h,4)}, v{V_L16}, s[4:7], s26 offen offset:{(h&1)*2048} sc1")
    wait_counter(A, L, "p", CNT_PX, f"s{S_SEG}", V_T)
    A(f"""    s_lshl_b32 s26, s{S_SEG}, 15
    s_lshl_b32 s27, s{S_TT}, 10
    s_add_u32 s26, s26, s27
    s_add_u32 s26, s26, {WS_PXX}""")
    for h in range(16):
        if h % 2 == 0 and h: A("    s_add_u32 s26, s26, 4096")
        A(f"    buffer_load_dwordx4 {v(V_PX+4*h,4)}, v{V_L16}, s[4:7], s26 offen offset:{(h&1)*2048} sc1")
    A(f"""    s_lshl_b32 s26, s{S_SEG}, 13
    s_add_u32 s26, s26, {WS_PXM}""")
    for q in range(4):
        if q == 2: A("    s_add_u32 s26, s26, 4096")
        A(f"    buffer_load_dwordx4 {v(V_PM+4*q,4)}, v{V_PMO}, s[4:7], s26 offen offset:{(q&1)*2048} sc1")
    wait_counter(A, L, "u", CNT_U, f"s{S_SEG}", V_T)
    A(f"""    s_mul_i32 s26, s{S_SEG}, {16*UX_SH}
    s_add_u32 s26, s26, {WS_UX}""")
    for q in range(4):
        A(f"    buffer_load_dwordx4 {v(V_U+4*q,4)}, v{V_UO}, s[4:7], s26 offen sc1")
        if q < 3: A(f"    s_add_u32 s26, s26, {4*UX_SH}")
    A("    s_waitcnt vmcnt(4)")
    for h in range(16):
        c = "0" if h == 0 else v(V_ACC,4)
        A(f"    v_mfma_f32_16x16x32_bf16 {v(V_ACC,4)}, {v(V_D+4*h,4)}, {v(V_PX+4*h,4)}, {c}")
    A("    s_waitcnt vmcnt(0)")
    for q in range(4):
        A(f"    v_mfma_f32_16x16x32_bf16 {v(V_ACC,4)}, {v(V_U+4*q,4)}, {v(V_PM+4*q,4)}, {v(V_ACC,4)}")
    A(f"""    s_mul_i32 s26, s{S_SEG}, {32*896}
    v_cvt_pk_bf16_f32 v{V_T}, v{V_ACC}, v{V_ACC+1}
    v_cvt_pk_bf16_f32 v{V_T+1}, v{V_ACC+2}, v{V_ACC+3}
    v_permlane32_swap_b32 v{V_T}, v{V_T+1}
    buffer_store_dwordx2 {v(V_T,2)}, v{V_OO}, s[20:23], s26 offen
    s_add_u32 s{S_SEG}, s{S_SEG}, 6
    s_cmp_lt_u32 s{S_SEG}, 64
    s_cbranch_scc1 {L}_loop""")
    if GPROF_on(): A("    s_waitcnt vmcnt(0)")
    gstamp(A, 1, 3, 172)
    A(f"""{L}_end:
    s_endpgm""")
```
